```python
import torch

def _softmax(x, axis=-1):
    return torch.softmax(x, dim=axis)

def _gelu(x):
    return torch.nn.functional.gelu(x, approximate='tanh')

def _silu(x):
    return torch.nn.functional.silu(x)

def _sigmoid(x):
    return torch.sigmoid(x)

def _layernorm(x, axis=-1, eps=1e-05):
    m = x.mean(dim=axis, keepdim=True)
    v = x.var(dim=axis, keepdim=True, unbiased=False)
    return (x - m) / torch.sqrt(v + eps)

def _scatter_add(tgt, idx, src, axis=0):
    return tgt.clone().index_add_(axis, idx, src)

def _segment_sum(src, seg, n):
    out = torch.zeros((n,) + src.shape[1:], dtype=src.dtype)
    return out.index_add_(0, seg, src)

def _pad(x, pw):
    flat = tuple((v for pair in reversed(pw) for v in pair))
    return torch.nn.functional.pad(x, flat)
kernel_name = 'adaLN_cond__ssm_conv_s4d__dense_activation_relu__prompt'

def setup_inputs():

    _w = lambda a: (lambda t: t.to(torch.bfloat16) if t.is_floating_point() else t)(torch.as_tensor(a))

    def _A_setup():
        Bsz, L, D, N = (1, 2048, 576, 128)
        return {'u': _w((lambda *s: torch.randn(*s, dtype=torch.bfloat16) * 0.05)(Bsz, L, D)), 'log_A_real': _w((lambda *s: torch.randn(*s, dtype=torch.bfloat16) * 3.2)(D, N) * 0.5), 'A_imag': _w((lambda *s: torch.randn(*s, dtype=torch.bfloat16) * 0.1)(D, N) * 3.14), 'C_real': _w((lambda *s: torch.randn(*s, dtype=torch.bfloat16) * 0.8)(D, N) / N ** 0.5), 'C_imag': _w((lambda *s: torch.randn(*s, dtype=torch.bfloat16) * 0.8)(D, N) / N ** 0.5), 'log_dt': _w((lambda *s: torch.randn(*s, dtype=torch.bfloat16) * 0.1)(D) * 0.5 - 4.0), 'D_skip': _w((lambda *s: torch.randn(*s, dtype=torch.bfloat16) * 0.1)(D))}
    _A_in = _A_setup()

    def _B_setup():
        B, S, D, Dff = (1, 2048, 576, 4608)
        return {'x': _w((lambda *s: torch.randn(*s, dtype=torch.bfloat16) * 0.05)(B, S, D)), 'w1': _w((lambda *s: torch.randn(*s, dtype=torch.bfloat16) * 0.05)(D, Dff)), 'w2': _w((lambda *s: torch.randn(*s, dtype=torch.bfloat16) * 0.05)(Dff, D))}
    _B_in = _B_setup()
    return {'A_u': _A_in['u'], 'A_log_A_real': _A_in['log_A_real'], 'A_A_imag': _A_in['A_imag'], 'A_C_real': _A_in['C_real'], 'A_C_imag': _A_in['C_imag'], 'A_log_dt': _A_in['log_dt'], 'A_D_skip': _A_in['D_skip'], 'B_x': _B_in['x'], 'B_w1': _B_in['w1'], 'B_w2': _B_in['w2'], 'c': _w((lambda *s: torch.randn(*s, dtype=torch.bfloat16) * 0.2)(1, 576) * 8.0), 'w_mod': _w((lambda *s: torch.randn(*s, dtype=torch.bfloat16) * 0.2)(576, 6 * 576) * 576 ** (-0.5) * 8.0)}

def reference(A_u, A_log_A_real, A_A_imag, A_C_real, A_C_imag, A_log_dt, A_D_skip, B_x, B_w1, B_w2, c, w_mod):

    def _A_ref(u, log_A_real, A_imag, C_real, C_imag, log_dt, D_skip):
        L = u.shape[1]
        dt = torch.exp(log_dt)
        A = -torch.exp(log_A_real) + 1j * A_imag
        C = (C_real + 1j * C_imag) * dt[:, None]
        pos = (lambda x, dt: x.to(dt))(torch.arange(L), log_dt.dtype)
        P = torch.exp((A * dt[:, None])[:, :, None] * pos[None, None, :])
        K = 2.0 * torch.einsum('dn,dnl->dl', C, P).real
        L2 = 2 * L
        u_t = (lambda x, *d: x.permute(*d))(u, 0, 2, 1)
        Kf = (lambda x, *a, **k: torch.fft.rfft(x.float(), *a, **k))(K, L2)
        Uf = (lambda x, *a, **k: torch.fft.rfft(x.float(), *a, **k))(u_t, L2)
        y = (lambda x, *a, **k: torch.fft.irfft(x, *a, **k).to(torch.bfloat16))(Uf * Kf[None, :, :], L2)[:, :, :L]
        y = (lambda x, *d: x.permute(*d))(y, 0, 2, 1)
        return y + u * D_skip[None, None, :]

    def _B_ref(x, w1, w2):
        h = torch.einsum('bsd,df->bsf', x, w1)
        zero = torch.zeros_like(h)
        h = torch.maximum(h, zero)
        return torch.einsum('bsf,fd->bsd', h, w2)
    x = A_u
    mod = (_silu(c) @ w_mod).reshape(c.shape[0], 6, 1, -1)
    sa, ca, ga, sb, cb, gb = (mod[:, 0].clone(), mod[:, 1].clone(), mod[:, 2].clone(), mod[:, 3].clone(), mod[:, 4].clone(), mod[:, 5].clone())
    h = _layernorm(x, axis=-1) * (1 + ca) + sa
    x = x + ga * _A_ref(h, A_log_A_real, A_A_imag, A_C_real, A_C_imag, A_log_dt, A_D_skip)
    h = _layernorm(x, axis=-1) * (1 + cb) + sb
    x = x + gb * _B_ref(h, B_w1, B_w2)
    return x
```

```python
from gen_common import *
HBASE = 73728; STAT = 147456
C_LDS = STAT + 1024
ACC=[32,48]; TMP=24; S1=32; S2=36; ONES=40; BX=44; CSP=64; AX=94; G1A=112
GB=64; GB8=68; XRES=70; GA=80
FLOFF=3; ONE=4
def frag(s,lt):
    f=4*s+lt
    return ar(144+4*f,4) if f<28 else vr(80+4*(f-28),4)
def xfrag(s,lt,half=None):
    r=144+16*(s&3)+4*lt
    return ar(r,4) if half is None else ar(r+2*half,2)

class VM:
    def __init__(self,cap=63): self.ops=[]; self.cap=cap
    def add(self,tag): self.ops.append(tag)
    def cnt(self,tag):
        i=len(self.ops)-1-self.ops[::-1].index(tag)
        return min(self.cap,sum(1 for t in self.ops[i+1:] if not t.startswith('~')))

def merge(ts):
    m=[]
    for xs in zip(*ts):
        assert len(set(len(t) for t in ts))==1
        if len(set(xs))>1:
            assert all(x.startswith("s_waitcnt vmcnt") for x in xs), xs
            m.append(f"s_waitcnt vmcnt({min(int(x[16:x.index(')')]) for x in xs)})"+xs[0][xs[0].index(')')+1:])
        else: m.append(xs[0])
    return m

def ffn_body(e, codepf=True):
    vm=VM(); lg=VM(15)
    def put(out,x):
        if x is None: return
        if callable(x): x=x()
        if isinstance(x,tuple):
            out.append(x[0]); (lg if x[0].startswith("ds_") else vm).add(x[1])
        else:
            out.append(x)
            if x.startswith("ds_"): lg.add("?")
    def emit(l):
        out=[]
        for x in l: put(out,x)
        for x in out: e(x)
    def L(t): return [y.strip() for y in t.strip().split("\n")]
    e(f"""
    v_lshlrev_b32 v2, 4, v0
    s_mul_i32 s20, s18, 73728
    s_lshl_b32 s24, s16, 10
    s_mov_b32 m0, s24
    s_add_u32 s20, s20, s24
    s_add_u32 s20, s20, {X1T}
    s_lshl_b32 s30, s17, 2
    s_add_u32 s30, s30, s16
    s_mul_i32 s28, s30, {WTS}
    s_add_u32 s28, s28, {WT-4096}
    """)
    def ringload(slot):
        o=[]
        if slot%4==0: o.append("s_add_u32 s28, s28, 4096")
        return o+[(f"buffer_load_dwordx4 {ar(4*slot,4)}, v2, s[12:15], s28 offen offset:{(slot%4)*1024}",f"r{slot}")]
    def xload(i): return [(f"buffer_load_dwordx4 v2, s[12:15], s20 offen lds",f"x{i}"),"s_add_u32 m0, m0, 4096","s_add_u32 s20, s20, 4096"]
    o=xload(0)+xload(1)
    for i in range(18):
        if i==9: o+=xload(2)
        o+=ringload(i)
    emit(o)
    e(f"""
    v_lshrrev_b32 v3, 2, v0
    v_mov_b32 v6, 0x80000000
    s_lshl_b32 s24, s16, 6
    v_lshrrev_b32 v7, 4, v0
    v_lshlrev_b32 v8, 4, v7
    s_lshr_b32 s25, s17, 1
    s_lshl_b32 s25, s25, 6
    s_and_b32 s26, s16, 1
    s_lshl_b32 s27, s26, 3
    v_and_b32 v9, 6, v3
    v_bfe_u32 v5, v0, 1, 1
    v_xor_b32 v9, v9, v5
    v_lshlrev_b32 v9, 4, v9
    v_lshl_add_u32 v9, v3, 7, v9
    v_and_b32 v5, 1, v0
    v_lshl_add_u32 v9, v5, 3, v9
    s_lshr_b32 s29, s16, 1
    s_lshl_b32 s29, s29, 12
    s_add_u32 s29, s29, s27
    s_add_u32 s29, s29, {HBASE}
    v_and_b32 v5, 15, v0
    v_and_b32 v27, 1, v7
    v_lshlrev_b32 v26, 4, v5
    v_lshl_add_u32 v25, v27, 2, v26
    s_mul_i32 s23, s30, 9216
    s_add_u32 s23, s23, {CSB}
    """)
    for lt in range(4):
        e(f"""
        s_add_u32 s36, s16, {lt}
        s_and_b32 s36, s36, 3
        s_lshl_b32 s31, s36, 5
        v_xor_b32 v{10+lt}, s31, v9
        s_lshl_b32 s31, s36, 10
        s_add_u32 s31, s31, s29
        v_add_u32 v{14+lt}, s31, v2
        s_lshl_b32 s31, s36, 8
        s_add_u32 s31, s31, {STAT}
        v_add_u32 v{18+lt}, s31, v25
        """)
    e(f"""
    v_add_u32 v23, {HBASE}, v2
    v_cmp_eq_u32 vcc, 0, v0
    v_mov_b32 v{ONE}, 1
    s_mov_b32 s37, 3
    v_cndmask_b32 v{FLOFF}, v6, v0, vcc
    """)
    for k in range(4): e(f"v_mov_b32 v{ONES+k}, 0x3f803f80")
    for k in range(8): e(f"v_mov_b32 v{S1+k}, 0")
    o=[]
    for i in range(18,36):
        if i%9==0: o+=xload(1+i//9)
        o+=ringload(i)+[f"v_mov_b32 v{G1A+8*(i-18)+k}, 0" for k in range(8)]
    o+=xload(5)
    o+=L(f"""s_mul_i32 s40, s18, {9*65536}
    s_lshl_b32 s42, s30, 11
    s_add_u32 s40, s40, s42
    s_add_u32 s40, s40, {PART}""")
    emit(o)
    stamp(e,1)
    def mf(d,a,b,c): return f"v_mfma_f32_16x16x32_bf16 {d}, {a}, {b}, {c}"
    def xreads(s,so):
        return [f"ds_read_b64_tr_b16 {xfrag(s,lt,h)}, v{10+lt} offset:{so*4096+h*2048}" for lt in range(4) for h in range(2)]
    def stats(s): return [mf(vr(S1,4), vr(ONES,4), xfrag(s,0), vr(S1,4)), mf(vr(S2,4), xfrag(s,0), xfrag(s,0), vr(S2,4))]
    def sched(groups, side, loads=True, per=2, lgw=None, wn=2):
        out=[]; side=list(side)
        for g,(slot,ms) in enumerate(groups):
            w=""
            if slot is not None and g%wn==0: w=f"vmcnt({min(vm.cnt(f'r{q[0]}') for q in groups[g:g+wn])})"
            if lgw and lgw(g) is not None: w+=f" lgkmcnt({lgw(g)})"
            if w: out.append("s_waitcnt "+w.strip())
            rl=ringload(slot) if loads else []
            for k,m in enumerate(ms):
                out.append(m); n=per
                if k==0 and len(rl)==2: put(out,rl.pop(0)); n-=1
                if k==3 and rl: put(out,rl.pop(0)); n=0
                if k==len(ms)-1: n=min(n,per-1)
                while n>0 and side:
                    if isinstance(side[0],int):
                        if side[0]>g: break
                        side.pop(0); continue
                    x=side.pop(0); put(out,x); n-=1
                    if isinstance(x,tuple) and x[0].startswith("buffer"): n-=1
        assert not side, len(side)
        return out
    def kstep(s, so, side=(), per=2, wn=3):
        sd=[]
        if s%2==0: sd+=[lambda: f"s_waitcnt vmcnt({vm.cnt(f'x{min(17,s+2)}')})","s_barrier"]
        sd+=(xreads(s+1,so) if s<17 else [])+(xload(s+6) if s<12 else [])+list(side)
        gs=[]
        for c in range(9):
            slot=(9*s+c)%36
            ms=[mf(vr(G1A+16*c+4*lt,4), ar(4*slot,4), xfrag(s,lt), vr(G1A+16*c+4*lt,4)) for lt in range(4)]
            if c==4 and s<17: ms+=stats(s)
            if c==8 and s==16: ms+=stats(17)
            gs.append((slot,ms))
        return sched(gs, sd, per=per, wn=wn, lgw=lambda g: 0 if (g==0 and s<17) or (g==8 and s==16) else None)
    e(f"s_waitcnt vmcnt({vm.cnt('x0')})\ns_barrier")
    stamp(e,2)
    emit(xreads(0,0))
    texts={}
    for s in range(12):
        q=s&3; sd=[f"v_add_u32 v{10+lt}, 0x4000, v{10+lt}" for lt in range(4)] if q==3 else []
        texts[s]=kstep(s,q+1,sd)
    e("C_l1:")
    for q in range(4):
        for x in merge([texts[s] for s in (q,q+4,q+8)]): e(x)
    e("s_sub_u32 s37, s37, 1\ns_cmp_lg_u32 s37, 0\ns_cbranch_scc1 C_l1")
    stamp(e,3)
    csl=[]
    for p in range(3):
        csl+=[(f"buffer_load_dwordx4 {vr(CSP+12*p,4)}, v2, s[12:15], s23 offen","cs"),(f"buffer_load_dwordx4 {vr(CSP+12*p+4,4)}, v2, s[12:15], s23 offen offset:1024","cs"),
              (f"buffer_load_dword v{CSP+12*p+8}, v2, s[12:15], s23 offen offset:2048","cs"),"s_add_u32 s23, s23, 3072"]
    sc=L(f"""s_lshl_b32 s41, s30, 2
    s_lshl_b32 s42, s18, 10
    s_add_u32 s41, s41, s42
    s_add_u32 s41, s41, {FLAGS}
    s_add_u32 s43, s40, {8*65536}
    s_lshl_b32 s44, s17, 7
    s_add_u32 s44, s44, s41
    s_add_u32 s45, s44, 0x10000
    s_mov_b32 s46, s17
    v_and_b32 v29, 3, v0
    v_cmp_eq_u32 s[52:53], 1, v29
    v_cmp_eq_u32 s[54:55], 2, v29
    v_cmp_eq_u32 s[56:57], 3, v29
    v_lshrrev_b32 v29, 2, v5
    v_cmp_eq_u32 s[58:59], v29, v7
    s_lshl_b32 s36, s16, 8
    s_add_u32 s36, s36, {STAT}
    v_add_u32 v26, s36, v26""")
    axb=[lambda: f"s_waitcnt vmcnt({vm.cnt('cs')})"]
    for c in range(9): axb+=[f"v_add_f32 v{CSP+c}, v{CSP+c}, v{CSP+12+c}"]
    for c in range(9): axb+=[f"v_add_f32 v{CSP+c}, v{CSP+c}, v{CSP+24+c}"]
    axb2=[]
    for c in range(9): axb2+=[f"v_cvt_pk_bf16_f32 v{AX+2*c}, v{CSP+c}, v{CSP+c}", f"v_and_b32 v{TMP+(c&1)}, 0xffff0000, v{AX+2*c}",
                              f"v_sub_f32 v{TMP+(c&1)}, v{CSP+c}, v{TMP+(c&1)}", f"v_cvt_pk_bf16_f32 v{AX+2*c+1}, v{TMP+(c&1)}, 0"]
    st=[1]+L(f"""v_cndmask_b32 v{S2}, v{S2}, v{S2+1}, s[52:53]
    v_cndmask_b32 v{S2}, v{S2}, v{S2+2}, s[54:55]
    v_cndmask_b32 v{S2}, v{S2}, v{S2+3}, s[56:57]
    v_mul_f32 v28, {0xbae38e39:#x}, v{S1}
    v_mul_f32 v{S2}, {0x3ae38e39:#x}, v{S2}
    v_fma_f32 v{S2}, -v28, v28, v{S2}
    v_max_f32 v{S2}, 0, v{S2}
    v_add_f32 v{S2}, {0x3727c5ac:#x}, v{S2}
    v_rsq_f32 v30, v{S2}
    v_sqrt_f32 v29, v{S2}""")
    st+=[None,"s_mov_b64 exec, s[58:59]\nds_write_b128 v26, v[28:31]\ns_mov_b64 exec, -1",4,"s_waitcnt lgkmcnt(0)","s_barrier"]+[f"ds_read_b32 v{TMP+lt}, v{18+lt}" for lt in range(4)]
    st+=[6,"s_waitcnt lgkmcnt(0)"]+[f"v_cvt_pk_bf16_f32 v{BX+2*lt+1}, v{TMP+lt}, 0" for lt in range(4)]
    st+=[f"v_lshlrev_b32 v{BX+2*lt}, 16, v{BX+2*lt+1}" for lt in range(4)]+[f"v_sub_f32 v{BX+2*lt}, v{TMP+lt}, v{BX+2*lt}" for lt in range(4)]
    st+=[f"v_cvt_pk_bf16_f32 v{BX+2*lt}, v{TMP+lt}, v{BX+2*lt}" for lt in range(4)]
    for x in kstep(12,1,csl): e(x)
    for x in kstep(13,2,sc): e(x)
    po=[f"v_mov_b32 v{76+k}, -1" for k in range(4)]
    for k in (5,6,7): po+=[f"s_add_u32 s{26+k}, s17, {k}",f"s_and_b32 s{26+k}, s{26+k}, 7",f"s_lshl_b32 s{26+k}, s{26+k}, 16",f"s_add_u32 s{26+k}, s{26+k}, s40"]
    for x in kstep(14,3,po[4:]): e(x)
    for x in kstep(15,4,axb): e(x)
    for x in kstep(16,5,axb2+po[:4]): e(x)
    for x in kstep(17,6,st)+["s_nop 1"]: e(x)
    stamp(e,4)
    def epi1(c):
        o=[]
        for lt in range(4):
            a=G1A+16*c+4*lt
            if c==8: o.append(f"v_add_u32 v{14+lt}, 8192, v{14+lt}")
            o+=[f"v_cvt_pk_bf16_f32 v{a}, v{a}, v{a+1}", f"v_cvt_pk_bf16_f32 v{a+1}, v{a+2}, v{a+3}",
                f"v_pk_max_i16 v{a}, v{a}, 0", f"v_pk_max_i16 v{a+1}, v{a+1}, 0", f"ds_write_b64 v{14+lt}, {vr(a,2)} offset:{min(c,7)*8192}"]
        return o
    side=sum([epi1(c) for c in range(5)],[]); o=[]
    for k in range(36):
        a=vr(G1A+4*k,4)
        o.append(f"v_mfma_f32_16x16x16_bf16 {a}, {vr(AX+2*(k>>2),2)}, {vr(BX+2*(k&3),2)}, {a}")
        if k<6: o.append((f"buffer_store_dwordx4 v[76:79], v2, s[12:15], s{31+(k>>1)} offen offset:{(k&1)*1024} sc1","po"))
        if k>=6:
            for _ in range(4 if k%3==0 else 3):
                if side: o.append(side.pop(0))
    def hreads(s):
        o=[]
        if s==16: o.append("v_add_u32 v23, 0x10000, v23")
        for lt in range(4): o.append((f"ds_read_b128 {frag(s,lt)}, v23 offset:{((s*4+lt)*1024)&0xffff}",f"h{s}"))
        return o
    emit(o+side+["s_waitcnt lgkmcnt(0)","s_barrier"]+hreads(0)+hreads(1)+epi1(5))
    stamp(e,5)
    def step(n, side, loads=True, per=2, order=range(18), lgw=None):
        acc=ACC[n&1]; rb=18*(n&1)
        gs=[(rb+s,[mf(vr(acc+4*lt,4), ar(4*(rb+s),4), frag(s,lt), "0" if si==0 else vr(acc+4*lt,4)) for lt in range(4)]) for si,s in enumerate(order)]
        return sched(gs, side, loads=loads, per=per, lgw=lgw)
    side=[]; ep=epi1(6)+epi1(7)+epi1(8)
    for s in range(16):
        side.append(s)
        if s==8: side+=["s_waitcnt lgkmcnt(0)","s_barrier"]
        side+=hreads(s+2)+ep[:8]; ep=ep[8:]
    o=step(9, side, per=5, lgw=lambda g: lg.cnt(f"h{g}"))
    assert max(k for k,x in enumerate(o) if x.startswith("ds_write")) < o.index("s_barrier")
    for x in o: e(x)
    stamp(e,6)
    adv2=["s_mov_b32 s45, s44","s_add_u32 s46, s46, 1","s_and_b32 s46, s46, 7","s_lshl_b32 s43, s46, 16","s_add_u32 s43, s43, s40","s_lshl_b32 s44, s46, 7","s_add_u32 s44, s44, s41"]
    def epi2(acc,n):
        o=[]
        for lt in range(4):
            o+=[f"v_cvt_pk_bf16_f32 v{TMP+2*lt}, v{acc+4*lt}, v{acc+4*lt+1}", f"v_cvt_pk_bf16_f32 v{TMP+2*lt+1}, v{acc+4*lt+2}, v{acc+4*lt+3}"]
            if lt&1: o.append((f"buffer_store_dwordx4 {vr(TMP+4*(lt>>1),4)}, v2, s[12:15], s43 offen offset:{(lt>>1)*1024} sc1",f"st{n}"))
        return o
    FL=(f"buffer_store_dword v{ONE}, v{FLOFF}, s[12:15], s45 offen sc1","fl")
    def flag(n): return [13, lambda: f"s_waitcnt vmcnt({vm.cnt(f'st{n-1}') if n>10 else 63})", FL]
    for n in range(10,16): texts[n]=step(n, [1]+epi2(ACC[(n-1)&1],n)+flag(n)+adv2)
    e("s_mov_b32 s37, 3\nC_l2:")
    for x in merge([texts[n] for n in (10,12,14)])+merge([texts[n] for n in (11,13,15)]): e(x)
    e("s_sub_u32 s37, s37, 1\ns_cmp_lg_u32 s37, 0\ns_cbranch_scc1 C_l2")
    stamp(e,7)
    tl=f"""s_lshl_b32 s31, s30, 11
    v_add_u32 v10, s31, v9
    v_xor_b32 v11, 32, v10
    v_xor_b32 v12, 64, v10
    v_xor_b32 v13, 0x60, v10
    s_lshl_b32 s31, s25, 5
    s_add_u32 s31, s31, 0x10000
    s_and_b32 s32, s17, 1
    s_lshl_b32 s32, s32, 1
    s_lshr_b32 s33, s16, 1
    s_add_u32 s32, s32, s33
    s_lshl_b32 s33, s32, 5
    v_xor_b32 v14, s33, v9
    v_add_u32 v14, s31, v14
    v_sub_u32 v15, s17, v0
    v_and_b32 v15, 7, v15
    v_lshlrev_b32 v15, 4, v15
    s_lshl_b32 s34, s17, 7
    s_lshl_b32 s35, s16, 2
    s_add_u32 s34, s34, s35
    v_add_u32 v15, s34, v15
    v_and_b32 v17, 7, v0
    v_mul_u32_u24 v17, 144, v17
    s_lshr_b32 s34, s25, 4
    v_add_u32 v17, s34, v17
    v_cmp_gt_u32 vcc, 40, v0
    v_add_u32 v18, s17, v0
    v_and_b32 v18, 7, v18
    v_mul_u32_u24 v18, 144, v18
    v_add_u32 v18, s35, v18
    v_cndmask_b32 v17, v18, v17, vcc
    v_and_b32 v18, 40, v0
    v_cmp_eq_u32 vcc, 0, v18
    s_lshl_b32 s34, s18, 10
    s_add_u32 s34, s34, {FLAGS}
    v_cndmask_b32 v15, v17, v15, vcc
    s_mul_i32 s35, s18, {9*65536}
    s_add_u32 s35, s35, {PART}
    s_lshl_b32 s36, s17, 16
    s_add_u32 s36, s36, s35
    s_lshl_b32 s37, s16, 11
    s_add_u32 s36, s36, s37
    s_lshl_b32 s37, s17, 10
    s_add_u32 s35, s35, s37
    s_lshl_b32 s37, s16, 2
    s_add_u32 s35, s35, s37
    s_add_u32 s35, s35, {8*65536}
    s_mov_b32 s50, 0x3f80
    s_mov_b32 s51, 0x3f800000
    v_mul_u32_u24 v16, 1152, v5
    v_lshl_add_u32 v16, v7, 3, v16
    v_lshlrev_b32 v22, 4, v5
    v_add_u32 v22, {STAT+8}, v22
    s_lshl_b32 s37, s32, 8
    v_add_u32 v23, s37, v22
    v_mov_b32 v20, 0
    v_mov_b32 v21, 0
    s_lshl_b32 s23, s17, 8
    s_add_u32 s23, s23, s24
    s_add_u32 s23, s23, {MOD+5*576*4}
    s_add_u32 s49, s25, s27
    s_add_u32 s49, s49, {MOD+(5*576+512)*4}""".split("\n")
    tl=[y.strip() for y in tl]
    tl+=[f"ds_read_b64_tr_b16 {vr(XRES+2*mt,2)}, v{10+mt}" for mt in range(4)]+[f"ds_read_b64_tr_b16 {vr(XRES+8,2)}, v14"]
    tl+=[f"ds_read_b32 v{10+mt}, v22 offset:{256*mt}" for mt in range(4)]+["ds_read_b32 v14, v23"]
    tl+=[(f"buffer_load_dwordx4 {vr(GB,4)}, v8, s[12:15], s23 offen","gb"),(f"buffer_load_dwordx2 {vr(GB8,2)}, v8, s[12:15], s49 offen","gb")]
    POLL="buffer_load_dword v19, v15, s[12:15], s34 offen sc1"
    for x in step(16, [1]+epi2(ACC[1],16)+adv2[1:5]+tl+[13,(POLL,"poll")], loads=False): e(x)
    stamp(e,8)
    def GR(k): return GA+8*(k-1)+(8 if k>4 else 0)
    def gaddr(k,r): return [f"s_sub_u32 s{r}, s17, {k}",f"s_and_b32 s{r}, s{r}, 7",f"s_lshl_b32 s{r}, s{r}, 13",f"s_add_u32 s{r}, s{r}, s36"]
    def gath(k,r): return [(f"buffer_load_dwordx4 {vr(GR(k)+4*h,4)}, v2, s[12:15], s{r} offen offset:{h*1024} sc1",f"g{k}{h}") for h in range(2)]
    B=ACC[0]; A=ACC[1]
    CHK=["v_cmp_eq_u32 vcc, 0, v19","s_mov_b32 s48, 0x8000","s_and_b64 s[60:61], vcc, s[38:39]"]
    early=[]
    for k in range(1,5): early+=gath(k,51+k)
    for k in range(8):
        early+=[f"s_add_u32 s37, s35, {8192*k}",(f"buffer_load_dword v{GA+32+k}, v2, s[12:15], s37 offen sc1",f"c{k}")]
    side=[1]+epi2(ACC[0],17)+["s_mov_b32 s38, 0xff1e","s_mov_b32 s39, 0x0e00"]
    for k in range(1,8): side+=gaddr(k,51+k)
    side+=[lambda: f"s_waitcnt vmcnt({vm.cnt('poll')})"]+CHK+early
    side+=L(f"""s_mul_i32 s42, s18, 73728
    s_lshl_b32 s30, s30, 5
    s_add_u32 s30, s30, s42
    s_mul_i32 s31, s32, {16*1152}
    s_add_u32 s31, s31, s42
    s_lshr_b32 s33, s25, 1
    s_add_u32 s31, s31, s33
    s_lshl_b32 s33, s26, 2
    s_add_u32 s31, s31, s33
    s_add_u32 s31, s31, 1024
    s_cmp_eq_u32 s26, 0
    s_cselect_b64 vcc, 0, -1
    s_waitcnt lgkmcnt(0)
    v_cndmask_b32 v{XRES+8}, v{XRES+8}, v{XRES+9}, vcc
    s_cmp_eq_u64 s[60:61], 0""")
    for x in step(17, side, loads=False, order=list(range(7,18))+list(range(7))): e(x)
    stamp(e,9)
    e(f"""
    s_cbranch_scc1 C_a_go
    C_a_p:
    {POLL}
    s_sub_u32 s48, s48, 1
    s_cbranch_scc1 C_a_to
    s_waitcnt vmcnt(0)
    {CHK[0]}
    s_nop 1
    {CHK[2]}
    s_cbranch_scc1 C_a_p
    C_a_to:
    """)
    for x in early: e(x[0] if isinstance(x,tuple) else x)
    e("C_a_go:")
    def accum(k,h,first=False,wait=True):
        o=[lambda: f"s_waitcnt vmcnt({vm.cnt(f'g{k}{h}')})"] if wait else []
        for d in range(4):
            a=B+8*h+2*d; r=GR(k)+4*h+d
            if first: o+=[f"v_lshlrev_b32 v{a}, 16, v{r}", f"v_and_b32 v{a+1}, 0xffff0000, v{r}"]
            else: o+=[f"v_dot2c_f32_bf16 v{a}, s50, v{r}", f"v_dot2c_f32_bf16 v{a+1}, s51, v{r}"]
        return o
    late=gath(5,56)+gath(6,57)+gath(7,58)
    o=list(late)
    for k in range(1,5):
        for h in range(2): o+=accum(k,h,k==1)
    o.append(lambda: f"s_waitcnt vmcnt({vm.cnt('c7')})")
    for k in range(8): o+=[f"v_dot2c_f32_bf16 v20, s50, v{GA+32+k}", f"v_dot2c_f32_bf16 v21, s51, v{GA+32+k}"]
    emit(o)
    for k in range(8): e(f"v_pk_add_f32 {vr(B+2*k,2)}, {vr(B+2*k,2)}, {vr(A+2*k,2)}")
    e(f"""
    v_mul_f32 v20, v20, v14
    v_mul_f32 v21, v21, v14
    v_lshlrev_b32 v{TMP}, 16, v{XRES+8}
    v_and_b32 v{TMP+1}, 0xffff0000, v{XRES+8}
    v_fmac_f32 v{TMP}, v{GB8}, v20
    v_fmac_f32 v{TMP+1}, v{GB8+1}, v21
    v_cvt_pk_bf16_f32 v{TMP}, v{TMP}, v{TMP+1}
    s_mov_b32 s48, 0x8000
    buffer_store_dword v{TMP}, v16, s[8:11], s31 offen
    s_waitcnt vmcnt(1)
    C_b_p:
    """)
    g=GR(5)
    e(f"v_max_u32 v19, v{g}, v{g+1}\nv_max_u32 v18, v{g+2}, v{g+3}")
    for k in range(2,12): e(f"v_max3_u32 v{19-(k&1)}, v{19-(k&1)}, v{g+2*k}, v{g+2*k+1}")
    e(f"""
    v_max_u32 v19, v18, v19
    v_cmp_eq_u32 vcc, -1, v19
    s_sub_u32 s48, s48, 1
    s_cbranch_scc1 C_b_go
    s_cbranch_vccz C_b_go
    """)
    for x in late: e(x[0])
    e("s_waitcnt vmcnt(0)\ns_branch C_b_p\nC_b_go:")
    stamp(e,10)
    for k in range(5,8):
        for h in range(2): emit(accum(k,h,wait=False))
    stamp(e,11)
    for mt in range(4):
        x=XRES+2*mt; q=GA+4*mt; a=B+4*mt
        e(f"""
        v_lshlrev_b32 v{q}, 16, v{x}
        v_and_b32 v{q+1}, 0xffff0000, v{x}
        v_lshlrev_b32 v{q+2}, 16, v{x+1}
        v_and_b32 v{q+3}, 0xffff0000, v{x+1}
        v_mul_f32 v{a}, v{a}, v{10+mt}
        v_mul_f32 v{a+1}, v{a+1}, v{10+mt}
        v_mul_f32 v{a+2}, v{a+2}, v{10+mt}
        v_mul_f32 v{a+3}, v{a+3}, v{10+mt}
        v_fmac_f32 v{q}, v{GB}, v{a}
        v_fmac_f32 v{q+1}, v{GB+1}, v{a+1}
        v_fmac_f32 v{q+2}, v{GB+2}, v{a+2}
        v_fmac_f32 v{q+3}, v{GB+3}, v{a+3}
        v_cvt_pk_bf16_f32 v{x}, v{q}, v{q+1}
        v_cvt_pk_bf16_f32 v{x+1}, v{q+2}, v{q+3}
        buffer_store_dwordx2 {vr(x,2)}, v16, s[8:11], s30 offen
        s_add_u32 s30, s30, {16*1152}
        """)
    stamp_end(e,2,12,16)

def gen_c():
    e=E()
    stamp(e,0)
    e(f"""
    s_cmp_ge_u32 s2, 256
    s_cbranch_scc1 C_exit
    s_load_dwordx2 s[12:13], s[0:1], 112
    s_load_dwordx2 s[8:9], s[0:1], 96
    v_lshrrev_b32 v1, 6, v0
    v_and_b32 v0, 63, v0
    v_readfirstlane_b32 s16, v1
    s_and_b32 s17, s2, 7
    s_lshr_b32 s18, s2, 3
    s_getpc_b64 s[4:5]
    s_lshl_b32 s6, s16, 13
    v_lshl_add_u32 v1, v0, 7, s6
    v_min_u32 v1, C_exit-ffn_kernel-64, v1
    s_cmp_ge_u32 s18, 2
    s_cbranch_scc1 C_nopf
    global_load_dword v1, v1, s[4:5]
    C_nopf:
    s_waitcnt lgkmcnt(0)
    """)
    srd(e,12,12,WSBYTES); srd(e,8,8,2359296)
    ffn_body(e)
    e("C_exit:\ns_endpgm")
    return kernel("ffn_kernel", e.text(), 512, 64, 256), f"; @launch kernel=ffn_kernel grid=(256,1,1) block=(256,1,1) lds={C_LDS}\n"
```

```python
NAME = "adaLN_cond__ssm_conv_s4d__dense_activation_relu__prompt"
XN   = 0x0000000
XX   = 0x0000000
FFL  = 0x06E0000
KR   = 0x0480000
KRS  = 4160
MOD  = 0x06D0000
MOD2 = 0x06D8000
CSB  = 0x25A0000
X1T  = 0x0720000
WT   = 0x0960000
WTS  = 324*1024
PART = 0x1380000
FLAGS= 0x2580000
WSBYTES = 0x10000000
LOG2E = 0x3fb8aa3b

import os
STAMP = 0x2600000
DIAG = int(os.environ.get("DIAG","0"))
def stamp(e, i):
    if DIAG: e(f"s_memrealtime s[{64+2*i}:{65+2*i}]")
def stamp_s(i):
    return [f"s_memrealtime s[{64+2*i}:{65+2*i}]"] if DIAG else []
def stamp_end(e, kid, n, wreg):
    if not DIAG: return
    e(f"s_waitcnt vmcnt(0)\ns_memrealtime s[{64+2*n}:{65+2*n}]\ns_waitcnt lgkmcnt(0)\ns_mov_b64 exec, 1")
    e(f"s_lshl_b32 s62, s2, 2\ns_add_u32 s62, s62, s{wreg}\ns_lshl_b32 s62, s62, 6\ns_add_u32 s62, s62, {STAMP+kid*2048*256}\nv_mov_b32 v1, 0")
    for i in range(n+1):
        e(f"v_mov_b32 v0, s{64+2*i}\nbuffer_store_dword v0, v1, s[12:15], s62 offen offset:{4*i}")
class E:
    def __init__(self): self.l=[]
    def __call__(self, s):
        for x in s.strip("\n").split("\n"):
            x=x.strip()
            if x: self.l.append(("" if x.endswith(":") else "    ")+x)
    def text(self): return "\n".join(self.l)+"\n"

def vr(b,n=1): return f"v{b}" if n==1 else f"v[{b}:{b+n-1}]"
def ar(b,n=1): return f"a{b}" if n==1 else f"a[{b}:{b+n-1}]"

def kernel(name, body, vgpr, sgpr, accum):
    return f""".text
.globl {name}
.p2align 8
.type {name},@function
{name}:
{body}
.section .rodata,"a"
.p2align 6
.amdhsa_kernel {name}
  .amdhsa_next_free_vgpr {vgpr}
  .amdhsa_next_free_sgpr {100 if DIAG else sgpr}
  .amdhsa_accum_offset {accum}
  .amdhsa_group_segment_fixed_size 0
  .amdhsa_kernarg_size 120
  .amdhsa_user_sgpr_count 2
  .amdhsa_user_sgpr_kernarg_segment_ptr 1
  .amdhsa_system_sgpr_workgroup_id_x 1
.end_amdhsa_kernel
"""

def srd(e, d, lo, nbytes):
    if lo != d:
        e(f"s_mov_b32 s{d}, s{lo}\ns_mov_b32 s{d+1}, s{lo+1}")
    e(f"s_mov_b32 s{d+2}, {nbytes:#x}\ns_mov_b32 s{d+3}, 0x20000")

def pt_issue(e, is_w1, uid):
    rs = 9216 if is_w1 else 1152
    if is_w1:
        e(f"s_mul_i32 s21, s20, {96*rs}\ns_mul_i32 s22, s17, 1152")
    else:
        e(f"s_mul_i32 s21, s20, {96*rs}\ns_mul_i32 s22, s17, {576*rs}")
    e(f"""
    s_add_u32 s21, s21, s22
    s_lshl_b32 s22, s19, 7
    s_add_u32 s21, s21, s22
    v_lshrrev_b32 v2, 3, v0
    v_and_b32 v3, 6, v2
    v_and_b32 v4, 7, v0
    v_xor_b32 v3, v3, v4
    v_lshlrev_b32 v3, 4, v3
    v_mul_u32_u24 v2, {rs}, v2
    v_add_u32 v2, v2, v3
    s_mul_i32 s23, s16, 24576
    s_add_u32 s23, s23, {12288 if is_w1 else 0}
    """)
    srd(e, 8, 44 if is_w1 else 46, 5308416)
    for i in range(12):
        e(f"s_add_u32 m0, s23, {i*1024}\ns_nop 0\nbuffer_load_dwordx4 v2, s[8:11], s21 offen lds")
        if i<11: e(f"s_add_u32 s21, s21, {8*rs}")

def pt_modload(e):
    if True:
        e(f"""
        v_lshrrev_b32 v5, 4, v0
        v_lshlrev_b32 v5, 4, v5
        s_mul_i32 s24, s20, 384
        s_add_u32 s24, s24, {MOD+3*576*4}
        """)
        for sh in range(6):
            e(f"buffer_load_dwordx4 {vr(64+4*sh,4)}, v5, s[12:15], s24 offen offset:{sh*64} sc1")
            e(f"buffer_load_dwordx4 {vr(88+4*sh,4)}, v5, s[12:15], s24 offen offset:{576*4+sh*64} sc1")
def pt_process(e, is_w1, nwait):
    e(f"""
    v_lshrrev_b32 v6, 2, v0
    v_and_b32 v7, 6, v6
    v_bfe_u32 v12, v0, 1, 1
    v_xor_b32 v7, v7, v12
    v_lshlrev_b32 v7, 4, v7
    v_lshlrev_b32 v6, 7, v6
    v_and_b32 v12, 1, v0
    v_lshlrev_b32 v12, 3, v12
    v_add3_u32 v6, v6, v12, s23
    v_add_u32 v8, v6, v7
    v_xor_b32 v9, 32, v8
    v_xor_b32 v10, 64, v8
    v_xor_b32 v11, 0x60, v8
    v_lshlrev_b32 v13, 4, v0
    s_mul_i32 s25, s17, {4*WTS}
    """)
    if is_w1:
        e(f"""
        s_mul_i32 s26, s20, {27*1024}
        s_add_u32 s25, s25, s26
        s_lshl_b32 s26, s19, 10
        v_add_u32 v14, 9216, v13
        v_add_u32 v15, 18432, v13
        """)
    else:
        e(f"""
        s_sub_u32 s26, s19, s17
        s_sub_u32 s26, s26, 1
        s_and_b32 s26, s26, 7
        s_add_u32 s26, s26, 1
        s_cmp_eq_u32 s19, 8
        s_cselect_b32 s26, 0, s26
        s_mul_i32 s26, s26, 18432
        s_add_u32 s25, s25, s26
        s_mul_i32 s26, s20, 3072
        s_add_u32 s26, s26, {162*1024}
        """)
    e(f"""
    s_add_u32 s25, s25, s26
    s_add_u32 s25, s25, {WT}
    s_add_u32 s26, s25, {WTS}
    s_add_u32 s27, s25, {2*WTS}
    s_add_u32 s28, s25, {3*WTS}
    """)
    if is_w1:
        e(f"s_waitcnt vmcnt({nwait})")
        stamp(e,6)
        e("v_mov_b32 v112, 0x3f803f80\nv_mov_b32 v113, v112\nv_mov_b32 v114, v112\nv_mov_b32 v115, v112")
        for k in range(24):
            e(f"v_add_f32 v{88+k}, 1.0, v{88+k}")
        for k in range(12):
            e(f"v_cvt_pk_bf16_f32 v{116+k}, v{64+2*k}, v{65+2*k}")
        for k in range(12):
            e(f"v_cvt_pk_bf16_f32 v{64+k}, v{88+2*k}, v{89+2*k}")
        for k in range(12):
            e(f"v_lshlrev_b32 v{88+2*k}, 16, v{64+k}\nv_and_b32 v{89+2*k}, 0xffff0000, v{64+k}")
    nst = 1
    for sp in range(3):
        for wv in range(4):
            for h in range(2):
                e(f"ds_read_b64_tr_b16 {vr(16+16*sp+4*wv+2*h,2)}, v{8+wv} offset:{(32*sp+16*h)*128}")
        for wv in range(4):
            b = 16+16*sp+4*wv
            e(f"s_waitcnt lgkmcnt({6-2*wv})")
            if is_w1:
                c0 = "0" if sp==0 else vr(128+4*wv,4)
                e(f"v_mfma_f32_16x16x32_bf16 {vr(128+4*wv,4)}, {vr(116+4*sp,4)}, {vr(b,4)}, {c0}")
                t = 64+8*(wv&1)
                for k in range(4):
                    e(f"v_lshlrev_b32 v{t+2*k}, 16, v{b+k}\nv_and_b32 v{t+2*k+1}, 0xffff0000, v{b+k}")
                for k in range(4):
                    e(f"v_pk_mul_f32 {vr(t+2*k,2)}, {vr(t+2*k,2)}, {vr(88+8*sp+2*k,2)}")
                for k in range(4):
                    e(f"v_cvt_pk_bf16_f32 v{b+k}, v{t+2*k}, v{t+2*k+1}")
                e(f"buffer_store_dwordx4 {vr(b,4)}, v{13+sp}, s[12:15], s{25+wv} offen sc1")
                e("s_nop 0")
                c1 = "0" if sp==0 else vr(144+4*wv,4)
                e(f"v_mfma_f32_16x16x32_bf16 {vr(144+4*wv,4)}, v[112:115], {vr(b,4)}, {c1}")
            else:
                e(f"buffer_store_dwordx4 {vr(b,4)}, v13, s[12:15], s{25+wv} offen offset:{sp*1024} sc1")
            nst += 1
    if is_w1:
        e(f"""
        v_mul_u32_u24 v6, 576, v5
        v_and_b32 v7, 15, v0
        v_lshl_add_u32 v6, v7, 4, v6
        v_cmp_eq_u32 s[30:31], 16, v5
        v_cmp_eq_u32 s[32:33], 32, v5
        v_cmp_eq_u32 s[34:35], 48, v5
        s_mul_i32 s24, s20, 3072
        s_cmp_ge_u32 s20, 3
        s_cselect_b32 s25, {9216-512}, 0
        s_sub_u32 s24, s24, s25
        s_mul_i32 s25, s17, 36864
        s_add_u32 s24, s24, s25
        s_lshr_b32 s25, s19, 2
        s_mul_i32 s25, s25, 1008
        s_add_u32 s24, s24, s25
        s_lshl_b32 s25, s19, 2
        s_add_u32 s24, s24, s25
        s_add_u32 s24, s24, {CSB}
        s_add_u32 s25, s24, 256
        v_cndmask_b32 v128, v128, v132, s[30:31]
        v_cndmask_b32 v128, v128, v136, s[32:33]
        v_cndmask_b32 v128, v128, v140, s[34:35]
        v_cndmask_b32 v144, v144, v148, s[30:31]
        v_cndmask_b32 v144, v144, v152, s[32:33]
        v_cndmask_b32 v144, v144, v156, s[34:35]
        buffer_store_dword v128, v6, s[12:15], s25 offen sc1
        buffer_store_dword v144, v6, s[12:15], s24 offen sc1
        """)
```

```python
from gen_common import *
F_HP=144
RS=32096; HO=8320; XB=13312; LNB=4*RS; MB=100352
F_LDS=147840
KS=544
PF1=int(os.environ.get('PF1','0'))
PF2=int(os.environ.get('PF2','1'))
CUT=int(os.environ.get('CUT','35'))
NONCE=FFL+8192
def tagload(e): e("v_mov_b32 v63, 0\ns_add_u32 s40, s40, 0x9e3779b1\nv_mov_b32 v62, s40")
def tagcheck(e, lab): pass
def bf16r(e, v):
    e(f"v_cvt_pk_bf16_f32 v{v}, v{v}, v{v}\nv_and_b32 v{v}, 0xffff0000, v{v}")

def red32(e, v, t):
    e("s_nop 1")
    for sh in (1,2,4,8):
        e(f"v_add_f32_dpp v{v}, v{v}, v{v} row_ror:{sh} row_mask:0xf bank_mask:0xf\ns_nop 1")
    e(f"v_mov_b32 v{t}, v{v}\ns_nop 1\nv_permlane16_swap_b32 v{v}, v{t}\ns_nop 1\nv_add_f32 v{v}, v{v}, v{t}")

def ln_body(e):
    e('F_ln:')
    stamp(e,2)
    for i in range(9):
        e(f"ds_write_b32 v1, v{4+i} offset:{8*1184+i*128}")
        e(f"v_lshlrev_b32 v{16+2*i}, 16, v{4+i}\nv_and_b32 v{17+2*i}, 0xffff0000, v{4+i}")
    e("v_add_f32 v34, v16, v17\nv_add_f32 v35, v18, v19")
    for i in range(4,18,2): e(f"v_add_f32 v34, v34, v{16+i}\nv_add_f32 v35, v35, v{17+i}")
    e("v_add_f32 v34, v34, v35")
    red32(e,34,35)
    e(f"v_mul_f32 v34, {0x3ae38e39:#x}, v34")
    for i in range(18): e(f"v_sub_f32 v{16+i}, v{16+i}, v34")
    e("v_mul_f32 v34, v16, v16\nv_mul_f32 v35, v17, v17")
    for i in range(2,18,2): e(f"v_fmac_f32 v34, v{16+i}, v{16+i}\nv_fmac_f32 v35, v{17+i}, v{17+i}")
    e("v_add_f32 v34, v34, v35")
    red32(e,34,35)
    e(f"v_mov_b32 v35, {0x3727c5ac:#x}\nv_fmac_f32 v35, {0x3ae38e39:#x}, v34\nv_rsq_f32 v34, v35\ns_nop 0")
    for i in range(18): e(f"v_mul_f32 v{16+i}, v{16+i}, v34")
    for i in range(9):
        e(f"v_cvt_pk_bf16_f32 v{4+i}, v{16+2*i}, v{17+2*i}\nds_write_b32 v1, v{4+i} offset:{i*128}")
    e(f"""
    v_and_b32 v43, 63, v0
    v_bfe_u32 v36, v43, 2, 2
    v_bfe_u32 v37, v43, 4, 1
    v_lshrrev_b32 v39, 5, v43
    v_and_b32 v40, 3, v0
    s_lshl_b32 s18, s16, 1
    v_add_u32 v39, s18, v39
    v_lshl_add_u32 v38, v39, 2, v36
    v_lshlrev_b32 v38, 7, v38
    v_lshl_add_u32 v38, v37, 6, v38
    v_lshl_add_u32 v38, v40, 4, v38
    v_lshl_add_u32 v36, v37, 3, v36
    v_mul_u32_u24 v36, 1184, v36
    v_lshl_add_u32 v36, v39, 5, v36
    v_lshl_add_u32 v36, v40, 3, v36
    v_add_u32 v36, {LNB}, v36
    s_lshl_b32 s17, s17, 1
    s_add_u32 s17, s17, {XX}
    s_cmp_lt_u32 s16, 2
    s_cselect_b32 s18, 0, 0x80000000
    v_or_b32 v41, s18, v38
    s_lshl_b32 s42, s2, 4
    s_lshl_b32 s18, s16, 2
    s_add_u32 s42, s42, s18
    s_add_u32 s42, s42, {FFL}
    s_waitcnt lgkmcnt(0)
    s_barrier
    """)
    for i in range(5): e(f"ds_read_b64_tr_b16 {vr(16+4*i,2)}, v36 offset:{i*256}\nds_read_b64_tr_b16 {vr(18+4*i,2)}, v36 offset:{i*256+4736}")
    for i in range(5): e(f"s_waitcnt lgkmcnt({8-2*i})\nbuffer_store_dwordx4 {vr(16+4*i,4)}, v{38 if i<4 else 41}, s[12:15], s17 offen sc1\ns_add_u32 s17, s17, 4096")
    e(f"""
    v_mov_b32 v44, 0
    v_lshlrev_b32 v45, 2, v0
    v_cmp_gt_u32 vcc, 32, v0
    v_mov_b32 v46, 0x80000000
    s_lshl_b32 s18, s2, 7
    s_add_u32 s18, s18, {FLAGS}
    v_cndmask_b32 v45, v46, v45, vcc
    buffer_store_dword v44, v45, s[12:15], s18 offen sc1
    """)
    tagload(e)
    stamp(e,3)
    e(f's_cmp_ge_u32 s2, {F_HP}\ns_cbranch_scc1 F_hp2')

def flagst(e, lab, sreg):
    e("s_waitcnt vmcnt(0)")
    tagcheck(e,lab)
    e(f"s_mov_b64 exec, 1\nbuffer_store_dword v62, v63, s[12:15], s{sreg} offen sc1\ns_mov_b64 exec, -1")

def role_help(e):
    e(f"""
    F_hp:
    s_cmp_ge_u32 s3, 108
    s_cbranch_scc1 F_sp
    v_lshrrev_b32 v64, 2, v0
    v_lshlrev_b32 v64, 1, v64
    """)
    for i in range(9): e(f"global_load_ushort v{68+i}, v64, s[48:49] offset:{i*128}")
    e("s_waitcnt vmcnt(9)\ns_branch F_ln\nF_hp2:\ns_cmp_ge_u32 s3, 108\ns_cbranch_scc1 F_h3\ns_waitcnt vmcnt(6)")
    for i in range(9): e(f"v_lshlrev_b32 v{68+i}, 16, v{68+i}")
    for i in range(9): e(f"v_mul_f32 v{44+i}, {0xbfb8aa3b:#x}, v{68+i}")
    for i in range(9): e(f"v_exp_f32 v{44+i}, v{44+i}")
    for i in range(9): e(f"v_add_f32 v{44+i}, 1.0, v{44+i}")
    for i in range(9): e(f"v_rcp_f32 v{44+i}, v{44+i}")
    for i in range(9): e(f"v_mul_f32 v{68+i}, v{68+i}, v{44+i}")
    for i in range(9): bf16r(e, 68+i)
    srd(e, 8, 50, 3981312)
    e('s_lshl_b32 s18, s3, 6\nv_lshrrev_b32 v64, 2, v0\nv_mul_u32_u24 v66, 6912, v64\nv_lshl_add_u32 v66, v65, 4, v66')
    flagst(e,'x',42)
    for i in range(9):
        e(f"buffer_load_dwordx4 {vr(80+4*i,4)}, v66, s[8:11], s18 offen")
        if i<8: e(f"s_add_u32 s18, s18, {64*6912}")
    for i in range(9):
        e(f"s_waitcnt vmcnt({8-i})")
        for k in range(4):
            b=80+4*i+k
            e(f"v_lshlrev_b32 v60, 16, v{b}\nv_and_b32 v61, 0xffff0000, v{b}")
            if i==0: e(f"v_mul_f32 v{52+2*k}, v60, v68\nv_mul_f32 v{53+2*k}, v61, v68")
            else: e(f"v_fmac_f32 v{52+2*k}, v60, v{68+i}\nv_fmac_f32 v{53+2*k}, v61, v{68+i}")
    e(f"v_lshrrev_b32 v1, 4, v0\nv_lshlrev_b32 v1, 7, v1\nv_lshl_add_u32 v1, v65, 5, v1\nv_add_u32 v1, {MB}, v1")
    for sh in (4,8):
        for k in range(8): e(f"v_add_f32_dpp v{52+k}, v{52+k}, v{52+k} row_ror:{sh} row_mask:0xf bank_mask:0xf")
    e(f"""
    ds_write_b128 v1, v[52:55]
    ds_write_b128 v1, v[56:59] offset:16
    s_waitcnt lgkmcnt(0)
    s_barrier
    """)
    stamp(e,4)
    e(f"""
    s_cmp_lg_u32 s16, 0
    s_cbranch_scc1 F_h1
    v_and_b32 v1, 31, v0
    v_lshlrev_b32 v1, 2, v1
    v_add_u32 v2, {MB}, v1
    v_add_u32 v3, {MB+1024}, v1
    """)
    for k in range(8): e(f"ds_read2_b32 {vr(44+2*k,2)}, v{2+(k>>2)} offset0:{64*(k&3)} offset1:{64*(k&3)+32}")
    e("s_waitcnt lgkmcnt(0)")
    for st in (8,4,2,1):
        for k in range(st): e(f"v_add_f32 v{44+k}, v{44+k}, v{44+st+k}")
    bf16r(e,44)
    e(f"""
    s_lshl_b32 s18, s3, 7
    s_add_u32 s18, s18, {MOD}
    s_lshl_b32 s19, s3, 8
    s_add_u32 s19, s19, {MOD2}
    v_mov_b32 v45, s40
    v_lshlrev_b32 v2, 1, v1
    s_mov_b32 exec_hi, 0
    buffer_store_dwordx2 v[44:45], v2, s[12:15], s19 offen sc1
    buffer_store_dword v44, v1, s[12:15], s18 offen sc1
    s_mov_b64 exec, -1
    s_lshl_b32 s42, s3, 4
    s_add_u32 s42, s42, {FFL+4096}
    F_h3:
    """)
    flagst(e,"F_h2",42)
    e("""
    F_h1:
    v_mov_b32 v0, v78
    s_barrier
    s_and_b32 s17, s2, 7
    s_lshl_b32 s18, s43, 2
    s_add_u32 s18, s18, s16
    s_cmp_ge_u32 s18, 54
    s_cbranch_scc1 F_exit
    s_mul_i32 s20, s18, 57
    s_lshr_b32 s20, s20, 9
    s_mul_i32 s19, s20, 9
    s_sub_u32 s19, s18, s19
    """)
    stamp(e,5)
    pt_issue(e, False, 3)
    e(f"""
    v_and_b32 v60, 3, v0
    v_min_u32 v60, 2, v60
    v_bfe_u32 v6, v0, 2, 1
    v_mul_u32_u24 v6, 18, v6
    v_add_u32 v60, v60, v6
    v_lshlrev_b32 v60, 4, v60
    s_mul_i32 s29, s20, 48
    s_add_u32 s29, s29, {FFL+4096+54*16}
    buffer_load_dword v61, v60, s[12:15], s29 offen sc1
    """)
    pt_issue(e, True, 3)
    e(f"""
    s_mov_b32 s25, 0x8000
    s_waitcnt vmcnt(12)
    F_mp:
    v_cmp_ne_u32 vcc, s40, v61
    s_nop 1
    s_cbranch_vccz F_mg
    buffer_load_dword v61, v60, s[12:15], s29 offen sc1
    s_sub_u32 s25, s25, 1
    s_waitcnt vmcnt(0)
    s_cbranch_scc0 F_mp
    F_mg:
    """)
    pt_modload(e)
    e("s_sub_u32 s23, s23, 12288"); pt_process(e, False, 0)
    e("s_add_u32 s23, s23, 12288"); pt_process(e, True, 12)
    stamp(e,7); stamp_end(e,0,8,16)
    e(f"""
    s_endpgm
    F_sp:
    s_waitcnt vmcnt(0)
    s_branch F_ln
    F_exit:
    s_endpgm
    """)

def pk(op,d,a,b,c=None,neg=False):
    return f"v_pk_{op}_f32 {vr(d,2)}, {vr(a,2)}, {vr(b,2)}"+(f", {vr(c,2)}" if c is not None else "")+(" neg_lo:[0,0,1] neg_hi:[0,0,1]" if neg else "")
def cmul(d,a,b,t):
    return [pk("mul",t,a+2,b+2), pk("mul",d+2,a+2,b), pk("fma",d,a,b,t,True), pk("fma",d+2,a,b+2,d+2)]
def direct(d,pf,t):
    o=[]
    for k in range(2): o+=[f"v_mul_f32 v{t+k}, {pf}, v{70+k}", f"v_mul_f32 v{t+2+k}, {pf}, v{72+k}"]
    for k in range(2): o+=[f"v_exp_f32 v{t+k}, v{t+k}", f"v_fract_f32 v{t+2+k}, v{t+2+k}"]
    for k in range(2): o+=[f"v_cos_f32 v{d+k}, v{t+2+k}", f"v_sin_f32 v{d+2+k}, v{t+2+k}"]
    return o+["s_nop 0",pk("mul",d,d,t),pk("mul",d+2,d+2,t)]

def role_cv(e):
    e(f"""
    s_lshl_b32 s30, s2, 2
    s_add_u32 s30, s30, s16
    s_lshl_b32 s19, s30, 8
    v_lshl_add_u32 v64, v78, 2, s19
    s_lshl_b32 s19, s30, 1
    v_mov_b32 v66, s19
    global_load_ushort v68, v66, s[24:25]
    global_load_dword v70, v64, s[8:9]
    global_load_dword v72, v64, s[10:11]
    global_load_dword v74, v64, s[20:21]
    global_load_dword v76, v64, s[22:23]
    global_load_ushort v69, v66, s[26:27]
    s_and_b32 s19, s2, 7
    s_lshr_b32 s20, s2, 3
    s_lshl_b32 s20, s20, 2
    s_add_u32 s20, s20, s16
    s_lshl_b32 s20, s20, 3
    v_and_b32 v64, 3, v0
    v_lshl_add_u32 v64, v64, 3, s19
    v_cmp_gt_u32 vcc, 27, v64
    v_bfe_u32 v67, v0, 2, 3
    v_mov_b32 v66, s19
    v_cndmask_b32 v64, v66, v64, vcc
    v_add_u32 v67, s20, v67
    v_mul_u32_u24 v67, 6912, v67
    v_lshl_add_u32 v67, v64, 7, v67
    global_load_dword v67, v67, s[50:51]
    s_getpc_b64 s[22:23]
    F_pc:
    v_lshlrev_b32 v64, 7, v0
    v_min_u32 v64, C_exit-F_pc, v64
    s_cmp_lt_u32 s2, 8
    s_cselect_b64 exec, -1, 1
    global_load_dword v64, v64, s[22:23]
    s_mov_b64 exec, -1
    """)
    e('s_waitcnt vmcnt(8)')
    ln_body(e)
    e(f"""
    v_mov_b32 v0, v78
    s_mul_i32 s23, s16, {RS}
    v_lshl_add_u32 v2, v0, 3, s23
    s_waitcnt vmcnt(8)
    v_lshlrev_b32 v68, 16, v68
    v_mul_f32 v68, {LOG2E:#x}, v68
    v_exp_f32 v68, v68
    """)
    for k in (70,72,74,76): e(f"v_and_b32 v{k+1}, 0xffff0000, v{k}\nv_lshlrev_b32 v{k}, 16, v{k}")
    e(f"v_mul_f32 v70, {LOG2E:#x}, v70\nv_mul_f32 v71, {LOG2E:#x}, v71\nv_exp_f32 v70, v70\nv_exp_f32 v71, v71\nv_lshlrev_b32 v69, 16, v69")
    bf16r(e,68); bf16r(e,70); bf16r(e,71)
    for k in range(4): e(f"v_mul_f32 v{70+k}, v{70+k}, v68")
    e("v_add_f32 v68, v68, v68")
    for k in range(2): e(f"v_mul_f32 v{70+k}, {0xbfb8aa3b:#x}, v{70+k}\nv_mul_f32 v{72+k}, 0.15915494, v{72+k}")
    for k in range(4): e(f"v_mul_f32 v{120+k}, v{74+k}, v68")
    cnt=[0,0]
    def wr(row,r,neg):
        t=(138 if neg else 94)+2*(cnt[neg]&1); cnt[neg]+=1; n="-" if neg else ""
        return [f"v_cvt_pk_bf16_f32 v{t}, v{r}, v{r+1}", f"v_cvt_pk_bf16_f32 v{t+1}, {n}v{r+2}, {n}v{r+3}", f"ds_write_b64 v2, {vr(t,2)} offset:{row*KS}"]
    col=direct(80,"0x41000000",84)+["v_mov_b32 v96, 0x3f803f80","v_mov_b32 v97, 0",f"ds_write_b64 v2, v[96:97] offset:{27*KS}"]+wr(28,80,0)
    cur=80
    for n in range(2,32):
        nx=84+4*(n&1); col+=cmul(nx,cur,80,92)+wr(27+n,nx,0); cur=nx
    rows=direct(100,"1.0",128)+direct(116,"0x43800000",132)+cmul(104,100,100,136)+cmul(108,104,104,136)+cmul(112,108,108,136)
    def chain(row0,start,mul,n):
        o=[]; cur=start
        for k in range(n):
            nx=128+4*(k&1); o+=cmul(nx,cur,mul,136)+wr(row0+k,nx,1); cur=nx
        return o
    g=120; rows+=wr(0,g,1)+chain(1,g,100,7)
    for (row,mul,n) in [(8,104,4),(13,108,2),(16,108,2),(19,112,1),(21,112,1),(23,112,1),(25,112,1)]:
        ng=244-g; rows+=cmul(ng,g,116,136); g=ng; rows+=wr(row,g,1)+chain(row+1,g,mul,n)
    mix=[x for p in __import__("itertools").zip_longest(col,rows) for x in p if x]
    cut=len(mix)*CUT//100
    for x in mix[:cut]: e(x)
    flagst(e,"F_c",42)
    e(f"""
    s_and_b32 s19, s2, 7
    s_lshr_b32 s20, s2, 3
    s_lshl_b32 s20, s20, 2
    s_add_u32 s20, s20, s16
    s_mul_i32 s21, s19, {576*1152}
    s_mul_i32 s22, s20, 9216
    s_add_u32 s21, s21, s22
    v_lshl_add_u32 v4, v0, 7, s21
    s_mul_i32 s21, s19, 1152
    s_lshl_b32 s22, s22, 3
    s_add_u32 s21, s21, s22
    v_lshrrev_b32 v5, 3, v0
    v_and_b32 v6, 7, v0
    v_mul_u32_u24 v5, 9216, v5
    v_lshl_add_u32 v5, v6, 7, v5
    v_add_u32 v5, s21, v5
    v_mul_u32_u24 v6, 9216, v6
    v_add_u32 v6, s21, v6
    v_add_u32 v7, 8192, v4
    {'global_load_dword v4, v4, s[46:47]' if PF2 else ''}
    {'global_load_dword v5, v5, s[44:45]' if PF1 else ''}
    s_mov_b64 exec, 0xff
    {'global_load_dword v7, v7, s[46:47]' if PF2 else ''}
    {'global_load_dword v6, v6, s[44:45] offset:1024' if PF1 else ''}
    s_mov_b64 exec, -1
    """.replace("v4","v48").replace("v5","v49").replace("v6","v50").replace("v7","v51"))
    stamp(e,4)
    for x in mix[cut:]: e(x)
    e(f"""
    v_and_b32 v5, 7, v0
    v_sub_u32 v5, 7, v5
    v_lshlrev_b32 v5, 2, v5
    v_and_b32 v6, 8, v0
    v_cmp_eq_u32 vcc, 0, v6
    v_lshrrev_b32 v14, 4, v0
    v_lshl_add_u32 v14, v14, 4, s23
    v_and_b32 v3, 15, v0
    v_mad_u32_u24 v7, v3, s31, v14
    s_waitcnt lgkmcnt(0)
    """.replace("    v_and_b32 v5, 7, v0",f"    s_movk_i32 s31, {KS}\n    v_and_b32 v5, 7, v0"))
    rd=[]
    for s in range(8): rd+=[f"ds_read_b128 {vr(80+8*s,4)}, v7 offset:{27*KS+64*s}", f"ds_read_b128 {vr(84+8*s,4)}, v7 offset:{43*KS+64*s}"]
    for x in rd: e(x)
    for rg,(n0,n1,b0,b1) in enumerate([(0x76543210,0x43222100,0,8),(0x22111000,0x22111000,13,16),(0x11100000,0x11100000,19,21),(0x11100000,0x11100000,23,25)]):
        e(f"""
        s_mov_b32 s24, {n0:#x}
        s_mov_b32 s25, {n1:#x}
        v_bfe_u32 v6, s24, v5, 4
        v_bfe_u32 v4, s25, v5, 4
        v_add_u32 v6, {b0}, v6
        v_add_u32 v4, {b1}, v4
        v_cndmask_b32 v6, v4, v6, vcc
        v_mad_u32_u24 v{8+rg}, v6, s31, v14
        """)
    def ard(rg): return [f"ds_read_b128 {vr(144+32*(rg&1)+4*s,4)}, v{8+rg} offset:{64*s}" for s in range(8)]
    for x in ard(0)+ard(1): e(x)
    e(f"""
    v_bfe_u32 v4, v0, 4, 1
    v_lshrrev_b32 v5, 5, v0
    v_lshlrev_b32 v3, 4, v3
    v_lshl_add_u32 v3, v5, 9, v3
    v_lshlrev_b32 v4, 3, v4
    v_sub_u32 v3, v4, v3
    s_add_u32 s19, s23, {4080-256-3072}
    v_add_u32 v3, s19, v3
    v_and_b32 v4, 0x11, v0
    v_cmp_eq_u32 s[24:25], 16, v0
    v_cmp_eq_u32 s[26:27], 1, v4
    v_lshrrev_b32 v4, 5, v0
    v_mul_u32_u24 v4, 4160, v4
    v_add_u32 v4, s23, v4
    v_and_b32 v5, 15, v0
    v_lshl_add_u32 v5, v5, 2, v4
    v_cndmask_b32 v69, 0, v69, s[24:25]
    """)
    def kout(rg):
        o=[]
        for h in range(2):
            a=16+8*rg+4*h; of=1024*(3-rg)+256*(1-h); t=12+h
            if rg>=2: o.append(f"v_cndmask_b32 v{a+3}, v{a+3}, v{a+2}, s[26:27]")
            if rg==0 and h==0: o.append(f"v_add_f32 v{a+3}, v{a+3}, v69")
            o+=[f"v_cvt_pk_bf16_f32 v{a}, v{a}, v{a+1}", f"v_cvt_pk_bf16_f32 v{t}, v{a+1}, v{a+2}", f"v_cvt_pk_bf16_f32 v{a+1}, v{a+2}, v{a+3}",
                f"ds_write_b64 v3, {vr(a,2)} offset:{of}", f"ds_write_b16 v3, v{a} offset:{of+4158}", f"ds_write_b32 v3, v{t} offset:{of+4160}", f"ds_write_b16_d16_hi v3, v{a+1} offset:{of+4164}"]
        return o
    for rg in range(4):
        e(f"s_waitcnt lgkmcnt({8 if rg<3 else 0})")
        side=["ds_write_b32 v5, v63 offset:4096","ds_write_b16 v4, v63 offset:4094"]+kout(0)+kout(1) if rg==3 else []
        for s in range(8):
            for h in range(2):
                a=vr(16+8*rg+4*h,4)
                e(f"v_mfma_f32_16x16x32_bf16 {a}, {vr(144+32*(rg&1)+4*s,4)}, {vr(80+8*s+4*h,4)}, {a if s else 0}")
                for _ in range(2):
                    if side: e(side.pop(0))
        if rg<2:
            for x in ard(rg+2): e(x)
    for x in kout(2)+kout(3): e(x)
    e("s_barrier")
    stamp(e,5)
    e(f"""
    s_mov_b32 s17, s2
    s_mov_b32 s18, s30
    v_lshrrev_b32 v2, 2, v0
    v_and_b32 v3, 3, v0
    v_mul_u32_u24 v4, 18432, v2
    v_lshl_add_u32 v4, v3, 4, v4
    v_lshlrev_b32 v5, 3, v3
    v_lshlrev_b32 v6, 4, v0
    s_mul_i32 s19, s16, {64*18432}
    s_lshl_b32 s20, s17, 7
    s_add_u32 s19, s19, s20
    s_lshl_b32 s21, s17, 5
    s_add_u32 s21, s21, {MOD2}
    s_add_u32 s22, s21, {576*8}
    s_lshl_b32 s24, s18, 3
    s_add_u32 s24, s24, {MOD2+2*576*8}
    s_lshl_b32 s26, s16, 12
    s_lshl_b32 s31, s16, 10
    s_add_u32 s31, s31, {FFL}
    v_mov_b32 v32, 0
    v_mov_b32 v33, 0
    v_mov_b32 v34, 0
    v_mov_b32 v35, 0
    s_add_u32 s27, s23, {HO}
    v_min_u32 v10, 29, v0
    v_lshl_add_u32 v10, v10, 4, s27
    v_mul_u32_u24 v12, {RS}, v3
    v_lshl_add_u32 v12, v2, 4, v12
    ds_write_b128 v10, v[32:35]
    s_lshl_b32 s28, s16, 10
    s_add_u32 s28, s28, {HO+480}
    v_add_u32 v12, s28, v12
    """)
    e(f"""
    v_and_b32 v36, 15, v0
    v_lshrrev_b32 v37, 4, v0
    v_sub_u32 v38, 1, v36
    v_and_b32 v38, 1, v38
    v_mul_u32_u24 v13, 4158, v38
    v_lshlrev_b32 v39, 1, v36
    v_sub_u32 v13, v13, v39
    v_lshl_add_u32 v13, v37, 4, v13
    s_add_u32 s28, s23, {2*2031-512*7}
    v_add_u32 v24, s28, v13
    v_add_u32 v1, 1024, v24
    v_add_u32 v11, 2048, v24
    v_add_u32 v13, 3072, v24
    v_mov_b32 v10, v24
    v_lshlrev_b32 v14, 5, v36
    v_lshl_add_u32 v14, v37, 4, v14
    s_add_u32 s28, s27, 448
    v_add_u32 v14, s28, v14
    v_lshrrev_b32 v38, 1, v37
    v_lshl_add_u32 v38, v36, 1, v38
    v_and_b32 v39, 1, v37
    v_lshlrev_b32 v39, 3, v39
    v_lshl_add_u32 v15, v38, 6, v39
    s_lshl_b32 s28, s16, 4
    s_add_u32 s28, s28, {XB}
    v_add_u32 v15, s28, v15
    v_and_b32 v38, 7, v38
    s_and_b32 s28, s18, 6
    v_xor_b32 v38, s28, v38
    v_mul_u32_u24 v39, {4*73728//8}, v39
    v_lshl_add_u32 v7, v38, 4, v39
    v_lshrrev_b32 v38, 2, v36
    v_mul_u32_u24 v38, 73728, v38
    v_add_u32 v7, v7, v38
    s_mov_b32 s41, 0x8000
    F_cp:
    buffer_load_dwordx4 v[40:43], v6, s[12:15], s31 offen sc1
    buffer_load_dwordx2 v[8:9], v5, s[12:15], s21 offen sc1
    buffer_load_dwordx2 v[44:45], v5, s[12:15], s22 offen sc1
    buffer_load_dwordx2 v[2:3], v63, s[12:15], s24 offen sc1
    s_sub_u32 s41, s41, 1
    s_cbranch_scc1 F_cg
    s_waitcnt vmcnt(0)
    v_xor_b32 v40, s40, v40
    v_xor_b32 v41, s40, v41
    v_xor_b32 v42, s40, v42
    v_xor_b32 v43, s40, v43
    v_xor_b32 v45, s40, v45
    v_or3_b32 v40, v40, v41, v42
    v_or3_b32 v40, v40, v43, v45
    v_xor_b32 v9, s40, v9
    v_xor_b32 v3, s40, v3
    v_or3_b32 v40, v40, v9, v3
    v_cmp_ne_u32 vcc, 0, v40
    s_nop 1
    s_cbranch_vccnz F_cp
    F_cg:
    """)
    stamp(e,6)
    for i in range(4):
        e(f"s_add_u32 s25, s19, {XX+i*16*18432}\nbuffer_load_dwordx4 {vr(16+4*i,4)}, v4, s[12:15], s25 offen sc1")
    for i in range(4):
        e(f"s_add_u32 m0, s26, {XB+i*1024}\ns_add_u32 s25, s19, {XX+64+i*16*18432}\nbuffer_load_dwordx4 v4, s[12:15], s25 offen sc1 lds")
    e(f"""
    v_add_f32 v9, 1.0, v44
    v_cvt_pk_bf16_f32 v9, v9, v9
    v_and_b32 v9, 0xffff0000, v9
    """)
    for i in range(4):
        e(f"s_waitcnt vmcnt({7-i})")
        for k in range(4):
            b=16+4*i+k
            e(f"""
            v_lshlrev_b32 v36, 16, v{b}
            v_and_b32 v37, 0xffff0000, v{b}
            v_fma_f32 v36, v36, v9, v8
            v_fma_f32 v37, v37, v9, v8
            v_cvt_pk_bf16_f32 v{b}, v36, v37
            """)
        e(f"ds_write_b128 v12, {vr(16+4*i,4)} offset:{i*256}")
    e("s_waitcnt vmcnt(0) lgkmcnt(0)\ns_barrier")
    e(f"s_cmp_lg_u32 s18, 0\ns_cbranch_scc1 F_nb\ns_mov_b32 s41, {NONCE}\ns_mov_b64 exec, 1\nbuffer_store_dword v62, v63, s[12:15], s41 offen sc1\ns_mov_b64 exec, -1\nF_nb:")
    stamp(e,7)
    AB=[64,128]
    ACC=32; XRES=16
    AD=[10,1,11,13]
    subs=[f'v_subrev_u32 v{r}, 128, v{r}' for r in AD]
    def reads(buf, eoff):
        r=[]
        for g in range(8):
            r.append(f"ds_read_b128 {vr(AB[buf]+32+4*g,4)}, v14 offset:{512*g+eoff}")
            o=(512*((7-g)&1)+eoff)//4; ad=AD[(7-g)>>1]
            r.append(f"ds_read2_b32 {vr(AB[buf]+4*g,2)}, v{ad} offset0:{o} offset1:{o+1}")
            r.append(f"ds_read2_b32 {vr(AB[buf]+4*g+2,2)}, v{ad} offset0:{o+2} offset1:{o+3}")
        return r
    order=[(t,g) for t in range(8) for g in range(t+1)]
    def body(buf, side):
        for n,(t,g) in enumerate(order):
            a=vr(ACC+4*t,4)
            e(f"v_mfma_f32_16x16x32_bf16 {a}, {vr(AB[buf]+4*g,4)}, {vr(AB[buf]+32+4*(t-g),4)}, {a}")
            if n<len(side): e(side[n])
    for r in reads(0,0): e(r)
    for k in range(32): e(f"v_mov_b32 v{ACC+k}, 0")
    e("\n".join(subs)+"\nv_subrev_u32 v14, 128, v14\ns_mov_b32 s29, 3\nF_loop:\ns_waitcnt lgkmcnt(0)")
    body(0, reads(1,64))
    e("s_waitcnt lgkmcnt(0)")
    body(1, reads(0,0)+subs+["v_subrev_u32 v14, 128, v14","s_sub_u32 s29, s29, 1","s_cmp_lg_u32 s29, 0"])
    e("s_cbranch_scc1 F_loop\ns_waitcnt lgkmcnt(0)")
    body(0, reads(1,64))
    e("s_waitcnt lgkmcnt(0)")
    body(1, [f"ds_read_b64 {vr(XRES+2*t,2)}, v15 offset:{t*2048}" for t in range(8)]+
            [f"s_lshl_b32 s28, s18, 7", f"s_add_u32 s28, s28, {X1T}"])
    e("s_waitcnt lgkmcnt(0)")
    stamp(e,8)
    for t in range(8):
        x=XRES+2*t; a=ACC+4*t; q=64+4*(t&1)
        e(f"""
        v_lshlrev_b32 v{q}, 16, v{x}
        v_and_b32 v{q+1}, 0xffff0000, v{x}
        v_lshlrev_b32 v{q+2}, 16, v{x+1}
        v_and_b32 v{q+3}, 0xffff0000, v{x+1}
        v_fmac_f32 v{q}, v2, v{a}
        v_fmac_f32 v{q+1}, v2, v{a+1}
        v_fmac_f32 v{q+2}, v2, v{a+2}
        v_fmac_f32 v{q+3}, v2, v{a+3}
        v_cvt_pk_bf16_f32 v{x}, v{q}, v{q+1}
        v_cvt_pk_bf16_f32 v{x+1}, v{q+2}, v{q+3}
        """)
        if t&1: e(f"s_nop 1\nv_permlane16_swap_b32 v{x-2}, v{x}\nv_permlane16_swap_b32 v{x-1}, v{x+1}\ns_nop 1\nbuffer_store_dwordx4 {vr(x-2,4)}, v7, s[12:15], s28 offen sc1\ns_add_u32 s28, s28, {8*73728}")
    stamp_end(e,0,9,16)
    e("s_endpgm")

def gen_f():
    e=E()
    stamp(e,0)
    e(f"""
    s_cmp_ge_u32 s2, 256
    s_cbranch_scc1 F_exit
    s_load_dwordx2 s[4:5], s[0:1], 0
    s_load_dwordx4 s[8:11], s[0:1], 8
    s_load_dwordx8 s[20:27], s[0:1], 24
    s_load_dwordx8 s[44:51], s[0:1], 64
    s_load_dwordx4 s[36:39], s[0:1], 104
    s_mul_i32 s17, s2, 9216
    v_lshrrev_b32 v1, 5, v0
    v_and_b32 v2, 31, v0
    v_mul_u32_u24 v3, 1152, v1
    v_lshl_add_u32 v3, v2, 2, v3
    v_add_u32 v3, s17, v3
    v_mul_u32_u24 v1, 1184, v1
    v_lshl_add_u32 v1, v2, 2, v1
    v_add_u32 v1, {LNB}, v1
    v_lshrrev_b32 v60, 6, v0
    s_sub_u32 s3, s2, {F_HP}
    s_lshr_b32 s43, s3, 3
    s_and_b32 s30, s3, 7
    s_lshr_b32 s18, s43, 1
    s_lshl_b32 s18, s18, 3
    s_add_u32 s30, s30, s18
    s_lshl_b32 s30, s30, 1
    s_and_b32 s19, s43, 1
    s_add_u32 s3, s30, s19
    v_and_b32 v65, 3, v0
    v_and_b32 v78, 63, v0
    s_waitcnt lgkmcnt(0)
    """)
    for i in range(9): e(f"global_load_dword v{4+i}, v3, s[4:5] offset:{i*128}")
    e(f's_mov_b32 s41, {NONCE}\ns_load_dword s40, s[38:39], s41')
    srd(e, 12, 38, WSBYTES)
    stamp(e,1)
    e(f"v_readfirstlane_b32 s16, v60\ns_cmp_ge_u32 s2, {F_HP}\ns_cbranch_scc1 F_hp")
    role_cv(e); role_help(e)
    return kernel("front_kernel", e.text(), 256, 64, 256), f"; @launch kernel=front_kernel grid=(256,1,1) block=(256,1,1) lds={F_LDS}\n"
```

```python
import sys
from gen_common import *
from gen_f import gen_f
from gen_c import gen_c
def build_all():
    ks=[gen_f(),gen_c()]
    hdr=open("cdna_kernels/"+NAME+".s.ref").read().split("; Override launch")[0]
    return hdr+"".join(k[1] for k in ks)+'.amdgcn_target "amdgcn-amd-amdhsa--gfx950"\n'+"".join(k[0] for k in ks)
if __name__=="__main__":
    out=sys.argv[1] if len(sys.argv)>1 else "cdna_kernels/"+NAME+".s"
    open(out,"w").write(build_all())
```

```python
import sys
from gen_common import *
from gen_f import gen_f
from gen_c import gen_c
def build_all():
    ks=[gen_f(),gen_c()]
    if os.environ.get("SUMK"):
        e=E()
        e(f"""
        s_cmp_lg_u32 s2, 0
        s_cbranch_scc1 S_exit
        s_load_dwordx4 s[4:7], s[0:1], 104
        v_lshlrev_b32 v1, 8, v0
        v_add_u32 v1, {STAMP}, v1
        v_add_u32 v2, {2*2048*256}, v1
        v_mov_b32 v3, {STAMP}
        v_mov_b32 v4, 0
        s_waitcnt lgkmcnt(0)
        global_load_dword v5, v3, s[6:7]
        """)
        for k in range(4): e(f"global_load_dwordx4 {vr(8+4*k,4)}, v1, s[6:7] offset:{16*k}\nglobal_load_dwordx4 {vr(24+4*k,4)}, v2, s[6:7] offset:{16*k}")
        e("s_waitcnt vmcnt(0)\nv_subrev_u32 v5, 50, v5")
        for k in range(32): e(f"v_sub_u32 v{8+k}, v{8+k}, v5")
        for i,k in enumerate((0,2,4,7,9,12)): e(f"global_atomic_umax v4, v{24+k}, s[4:5] offset:{40+4*i}")
        e("v_cmp_gt_u32 vcc, 144, v0\ns_and_saveexec_b64 s[10:11], vcc")
        for i,k in enumerate((2,3,5,6,7,9)): e(f"global_atomic_umax v4, v{8+k}, s[4:5] offset:{4*i}")
        e("s_andn2_b64 exec, s[10:11], vcc")
        for i,k in enumerate((2,5,6,8)): e(f"global_atomic_umax v4, v{8+k}, s[4:5] offset:{24+4*i}")
        e("S_exit:\ns_endpgm")
        ks.append((kernel("sum_kernel", e.text(), 64, 32, 64), "; @launch kernel=sum_kernel grid=(1,1,1) block=(256,1,1) lds=0\n"))
    hdr=open("cdna_kernels/"+NAME+".s.ref").read().split("; Override launch")[0]
    return hdr+"".join(k[1] for k in ks)+'.amdgcn_target "amdgcn-amd-amdhsa--gfx950"\n'+"".join(k[0] for k in ks)
if __name__=="__main__":
    out=sys.argv[1] if len(sys.argv)>1 else "cdna_kernels/"+NAME+".s"
    open(out,"w").write(build_all())
```

```python
import sys
from gen_common import *
from gen_f import gen_f
from gen_c import gen_c
def build_all():
    ks=[gen_f(),gen_c()]
    if os.environ.get("SUMK"):
        e=E()
        e(f"""
        s_cmp_lg_u32 s2, 0
        s_cbranch_scc1 S_exit
        s_load_dwordx4 s[4:7], s[0:1], 104
        v_lshlrev_b32 v1, 8, v0
        v_add_u32 v1, {STAMP}, v1
        v_add_u32 v2, {2*2048*256}, v1
        v_mov_b32 v3, {STAMP}
        v_mov_b32 v4, 0
        s_waitcnt lgkmcnt(0)
        global_load_dword v5, v3, s[6:7]
        """)
        for k in range(4): e(f"global_load_dwordx4 {vr(8+4*k,4)}, v1, s[6:7] offset:{16*k}\nglobal_load_dwordx4 {vr(24+4*k,4)}, v2, s[6:7] offset:{16*k}")
        e("s_waitcnt vmcnt(0)\nv_subrev_u32 v5, 50, v5")
        for k in range(32): e(f"v_sub_u32 v{8+k}, v{8+k}, v5")
        for i,k in enumerate((0,2,4,7,9,12)): e(f"global_atomic_umax v4, v{24+k}, s[4:5] offset:{40+4*i}")
        e("v_cmp_gt_u32 vcc, 144, v0\ns_and_saveexec_b64 s[10:11], vcc")
        for i,k in enumerate((2,3,5,6,7,9)): e(f"global_atomic_umax v4, v{8+k}, s[4:5] offset:{4*i}")
        e("s_andn2_b64 exec, s[10:11], vcc")
        for i,k in enumerate((2,5,6,8)): e(f"global_atomic_umax v4, v{8+k}, s[4:5] offset:{24+4*i}")
        if os.environ.get("SPIN"):
            e(f"""
            s_mov_b64 exec, -1
            s_waitcnt vmcnt(0)
            s_barrier
            global_load_dword v6, v4, s[4:5] offset:{4*int(os.environ["SPIN"])} sc1
            s_memrealtime s[12:13]
            s_waitcnt vmcnt(0) lgkmcnt(0)
            v_readfirstlane_b32 s14, v6
            s_min_u32 s14, s14, 10000
            s_mul_i32 s14, s14, 20
            S_sp:
            s_memrealtime s[16:17]
            s_waitcnt lgkmcnt(0)
            s_sub_u32 s16, s16, s12
            s_cmp_lt_u32 s16, s14
            s_cbranch_scc1 S_sp
            """)
        e("S_exit:\ns_endpgm")
        ks.append((kernel("sum_kernel", e.text(), 64, 32, 64), "; @launch kernel=sum_kernel grid=(1,1,1) block=(256,1,1) lds=0\n"))
    hdr=open("cdna_kernels/"+NAME+".s.ref").read().split("; Override launch")[0]
    return hdr+"".join(k[1] for k in ks)+'.amdgcn_target "amdgcn-amd-amdhsa--gfx950"\n'+"".join(k[0] for k in ks)
if __name__=="__main__":
    out=sys.argv[1] if len(sys.argv)>1 else "cdna_kernels/"+NAME+".s"
    open(out,"w").write(build_all())
```

```python
from gen_common import *
F_HP=144
RS=32096; HO=8320; LNB=4*RS; XB=LNB; MB=100352
F_LDS=147840
KS=544
FI=int(os.environ.get('FI','4'))
PKM=int(os.environ.get('PKM','1'))
CUT2=int(os.environ.get('CUT2','95'))
PF1=int(os.environ.get('PF1','1'))
PF2=int(os.environ.get('PF2','1'))
CUT=int(os.environ.get('CUT','35'))
NONCE=FFL+8192
def tagload(e): e("v_mov_b32 v63, 0\ns_add_u32 s40, s40, 0x9e3779b1\nv_mov_b32 v62, s40")
def tagcheck(e, lab): pass
def bf16r(e, v):
    e(f"v_cvt_pk_bf16_f32 v{v}, v{v}, v{v}\nv_and_b32 v{v}, 0xffff0000, v{v}")

def red32(e, v, t):
    e("s_nop 1")
    for sh in (1,2,4,8):
        e(f"v_add_f32_dpp v{v}, v{v}, v{v} row_ror:{sh} row_mask:0xf bank_mask:0xf\ns_nop 1")
    e(f"v_mov_b32 v{t}, v{v}\ns_nop 1\nv_permlane16_swap_b32 v{v}, v{t}\ns_nop 1\nv_add_f32 v{v}, v{v}, v{t}")

def ln_body(e):
    e('F_ln:')
    stamp(e,2)
    for i in range(9):
        e(f"ds_write_b32 v1, v{4+i} offset:{8*1184+i*128}")
        e(f"v_lshlrev_b32 v{16+2*i}, 16, v{4+i}\nv_and_b32 v{17+2*i}, 0xffff0000, v{4+i}")
    e("v_add_f32 v34, v16, v17\nv_add_f32 v35, v18, v19")
    for i in range(4,18,2): e(f"v_add_f32 v34, v34, v{16+i}\nv_add_f32 v35, v35, v{17+i}")
    e("v_add_f32 v34, v34, v35")
    red32(e,34,35)
    e(f"v_mul_f32 v34, {0x3ae38e39:#x}, v34")
    for i in range(18): e(f"v_sub_f32 v{16+i}, v{16+i}, v34")
    e("v_mul_f32 v34, v16, v16\nv_mul_f32 v35, v17, v17")
    for i in range(2,18,2): e(f"v_fmac_f32 v34, v{16+i}, v{16+i}\nv_fmac_f32 v35, v{17+i}, v{17+i}")
    e("v_add_f32 v34, v34, v35")
    red32(e,34,35)
    e(f"v_mov_b32 v35, {0x3727c5ac:#x}\nv_fmac_f32 v35, {0x3ae38e39:#x}, v34\nv_rsq_f32 v34, v35\ns_nop 0")
    for i in range(18): e(f"v_mul_f32 v{16+i}, v{16+i}, v34")
    for i in range(9):
        e(f"v_cvt_pk_bf16_f32 v{4+i}, v{16+2*i}, v{17+2*i}\nds_write_b32 v1, v{4+i} offset:{i*128}")
    e(f"""
    v_and_b32 v43, 63, v0
    v_bfe_u32 v36, v43, 2, 2
    v_bfe_u32 v37, v43, 4, 1
    v_lshrrev_b32 v39, 5, v43
    v_and_b32 v40, 3, v0
    s_lshl_b32 s18, s16, 1
    v_add_u32 v39, s18, v39
    v_lshl_add_u32 v38, v39, 2, v36
    v_lshlrev_b32 v38, 7, v38
    v_mul_u32_u24 v41, 0x240000, v37
    v_add_u32 v38, v41, v38
    v_lshl_add_u32 v38, v40, 4, v38
    v_lshl_add_u32 v36, v37, 3, v36
    v_mul_u32_u24 v36, 1184, v36
    v_lshl_add_u32 v36, v39, 5, v36
    v_lshl_add_u32 v36, v40, 3, v36
    v_add_u32 v36, {LNB}, v36
    s_and_b32 s18, s2, 1
    s_mul_i32 s18, s18, {9216-64}
    s_sub_u32 s17, s17, s18
    s_cmp_lt_u32 s16, 2
    s_cselect_b32 s18, 0, 0x80000000
    v_or_b32 v41, s18, v38
    s_lshl_b32 s42, s2, 4
    s_lshl_b32 s18, s16, 2
    s_add_u32 s42, s42, s18
    s_add_u32 s42, s42, {FFL}
    s_waitcnt lgkmcnt(0)
    s_barrier
    """)
    for i in range(5): e(f"ds_read_b64_tr_b16 {vr(16+4*i,2)}, v36 offset:{i*256}\nds_read_b64_tr_b16 {vr(18+4*i,2)}, v36 offset:{i*256+4736}")
    for i in range(5): e(f"s_waitcnt lgkmcnt({8-2*i})\nbuffer_store_dwordx4 {vr(16+4*i,4)}, v{38 if i<4 else 41}, s[12:15], s17 offen sc1\ns_add_u32 s17, s17, 4096")
    e(f"""
    v_mov_b32 v44, 0
    v_lshlrev_b32 v45, 2, v0
    v_cmp_gt_u32 vcc, 32, v0
    v_mov_b32 v46, 0x80000000
    s_lshl_b32 s18, s2, 7
    s_add_u32 s18, s18, {FLAGS}
    v_cndmask_b32 v45, v46, v45, vcc
    buffer_store_dword v44, v45, s[12:15], s18 offen sc1
    """)
    tagload(e)
    stamp(e,3)
    e('s_cmp_eq_u32 s63, 1\ns_cbranch_scc1 F_hp2')

def flagst(e, lab, sreg):
    e("s_waitcnt vmcnt(0)")
    tagcheck(e,lab)
    e(f"s_mov_b64 exec, 1\nbuffer_store_dword v62, v63, s[12:15], s{sreg} offen sc1\ns_mov_b64 exec, -1")

def role_help(e):
    e(f"""
    F_hp:
    s_mov_b32 s63, 1
    s_cmp_ge_u32 s3, 108
    s_cbranch_scc1 F_sp
    v_lshrrev_b32 v64, 2, v0
    v_lshlrev_b32 v64, 1, v64
    """)
    for i in range(9): e(f"global_load_ushort v{68+i}, v64, s[48:49] offset:{i*128}")
    srd(e, 8, 50, 3981312)
    e('s_lshl_b32 s18, s3, 6\nv_mul_u32_u24 v66, 3456, v64\nv_lshl_add_u32 v66, v65, 4, v66')
    for i in range(9):
        e(f"buffer_load_dwordx4 {vr(80+4*i,4)}, v66, s[8:11], s18 offen")
        if i<8: e(f"s_add_u32 s18, s18, {64*6912}")
    e("s_waitcnt vmcnt(18)\ns_branch F_ln\nF_hp2:\ns_cmp_ge_u32 s3, 108\ns_cbranch_scc1 F_h3\ns_waitcnt vmcnt(15)")
    for i in range(9): e(f"v_lshlrev_b32 v{68+i}, 16, v{68+i}")
    for i in range(9): e(f"v_mul_f32 v{44+i}, {0xbfb8aa3b:#x}, v{68+i}")
    for i in range(9): e(f"v_exp_f32 v{44+i}, v{44+i}")
    for i in range(9): e(f"v_add_f32 v{44+i}, 1.0, v{44+i}")
    for i in range(9): e(f"v_rcp_f32 v{44+i}, v{44+i}")
    for i in range(9): e(f"v_mul_f32 v{68+i}, v{68+i}, v{44+i}")
    for i in range(9): bf16r(e, 68+i)
    for i in range(9):
        if i<FI: e(f"s_waitcnt vmcnt({14-i})")
        if i==FI: flagst(e,'x',42)
        for k in range(4):
            b=80+4*i+k
            e(f"v_lshlrev_b32 v60, 16, v{b}\nv_and_b32 v61, 0xffff0000, v{b}")
            if i==0: e(f"v_mul_f32 v{52+2*k}, v60, v68\nv_mul_f32 v{53+2*k}, v61, v68")
            else: e(f"v_fmac_f32 v{52+2*k}, v60, v{68+i}\nv_fmac_f32 v{53+2*k}, v61, v{68+i}")
    e(f"v_lshrrev_b32 v1, 4, v0\nv_lshlrev_b32 v1, 7, v1\nv_lshl_add_u32 v1, v65, 5, v1\nv_add_u32 v1, {MB}, v1")
    for sh in (4,8):
        for k in range(8): e(f"v_add_f32_dpp v{52+k}, v{52+k}, v{52+k} row_ror:{sh} row_mask:0xf bank_mask:0xf")
    e(f"""
    ds_write_b128 v1, v[52:55]
    ds_write_b128 v1, v[56:59] offset:16
    s_waitcnt lgkmcnt(0)
    s_barrier
    """)
    stamp(e,4)
    e(f"""
    s_cmp_lg_u32 s16, 0
    s_cbranch_scc1 F_h1
    v_and_b32 v1, 31, v0
    v_lshlrev_b32 v1, 2, v1
    v_add_u32 v2, {MB}, v1
    v_add_u32 v3, {MB+1024}, v1
    """)
    for k in range(8): e(f"ds_read2_b32 {vr(44+2*k,2)}, v{2+(k>>2)} offset0:{64*(k&3)} offset1:{64*(k&3)+32}")
    e("s_waitcnt lgkmcnt(0)")
    for st in (8,4,2,1):
        for k in range(st): e(f"v_add_f32 v{44+k}, v{44+k}, v{44+st+k}")
    bf16r(e,44)
    e(f"""
    s_lshl_b32 s18, s3, 7
    s_add_u32 s18, s18, {MOD}
    s_lshl_b32 s19, s3, 8
    s_add_u32 s19, s19, {MOD2}
    v_mov_b32 v45, s40
    v_lshlrev_b32 v2, 1, v1
    s_mov_b32 exec_hi, 0
    buffer_store_dwordx2 v[44:45], v2, s[12:15], s19 offen sc1
    buffer_store_dword v44, v1, s[12:15], s18 offen sc1
    s_mov_b64 exec, -1
    s_lshl_b32 s42, s3, 4
    s_add_u32 s42, s42, {FFL+4096}
    F_h3:
    """)
    flagst(e,"F_h2",42)
    e("""
    F_h1:
    v_mov_b32 v0, v78
    s_barrier
    s_and_b32 s17, s2, 7
    s_lshl_b32 s18, s43, 2
    s_add_u32 s18, s18, s16
    s_cmp_ge_u32 s18, 54
    s_cbranch_scc1 F_exit
    s_mul_i32 s20, s18, 57
    s_lshr_b32 s20, s20, 9
    s_mul_i32 s19, s20, 9
    s_sub_u32 s19, s18, s19
    """)
    stamp(e,5)
    pt_issue(e, False, 3)
    e(f"""
    v_and_b32 v60, 3, v0
    v_min_u32 v60, 2, v60
    v_bfe_u32 v6, v0, 2, 1
    v_mul_u32_u24 v6, 18, v6
    v_add_u32 v60, v60, v6
    v_lshlrev_b32 v60, 4, v60
    s_mul_i32 s29, s20, 48
    s_add_u32 s29, s29, {FFL+4096+54*16}
    buffer_load_dword v61, v60, s[12:15], s29 offen sc1
    """)
    pt_issue(e, True, 3)
    e(f"""
    s_mov_b32 s25, 0x8000
    s_waitcnt vmcnt(12)
    F_mp:
    v_cmp_ne_u32 vcc, s40, v61
    s_nop 1
    s_cbranch_vccz F_mg
    buffer_load_dword v61, v60, s[12:15], s29 offen sc1
    s_sub_u32 s25, s25, 1
    s_waitcnt vmcnt(0)
    s_cbranch_scc0 F_mp
    F_mg:
    """)
    pt_modload(e)
    e("s_sub_u32 s23, s23, 12288"); pt_process(e, False, 0)
    e("s_add_u32 s23, s23, 12288"); pt_process(e, True, 12)
    stamp(e,7); stamp_end(e,0,8,16)
    e(f"""
    s_endpgm
    F_sp:
    s_waitcnt vmcnt(0)
    s_branch F_ln
    F_exit:
    s_endpgm
    """)

def pk(op,d,a,b,c=None,neg=False):
    return f"v_pk_{op}_f32 {vr(d,2)}, {vr(a,2)}, {vr(b,2)}"+(f", {vr(c,2)}" if c is not None else "")+(" neg_lo:[0,0,1] neg_hi:[0,0,1]" if neg else "")
NEG={80:144,100:146,104:148,108:150,112:152,116:154}
def cmul(d,a,b,t):
    if PKM: return [pk("mul",t,a+2,b+2), pk("mul",d+2,a+2,b), pk("fma",d,a,b,t,True), pk("fma",d+2,a,b+2,d+2)]
    o=[f"v_mul_f32 v{d+k}, v{a+k}, v{b+(k&1)}" for k in range(4)]
    o+=[f"v_fmac_f32 v{d+k}, v{a+2+k}, v{NEG[b]+k}" for k in range(2)]+[f"v_fmac_f32 v{d+2+k}, v{a+k}, v{b+2+k}" for k in range(2)]
    return o+neg(d)
def neg(d): return [f"v_sub_f32 v{NEG[d]+k}, 0, v{d+2+k}" for k in range(2)] if d in NEG and not PKM else []
def direct(d,pf,t):
    o=[]
    for k in range(2): o+=[f"v_mul_f32 v{t+k}, {pf}, v{70+k}", f"v_mul_f32 v{t+2+k}, {pf}, v{72+k}"]
    for k in range(2): o+=[f"v_exp_f32 v{t+k}, v{t+k}", f"v_fract_f32 v{t+2+k}, v{t+2+k}"]
    for k in range(2): o+=[f"v_cos_f32 v{d+k}, v{t+2+k}", f"v_sin_f32 v{d+2+k}, v{t+2+k}"]
    return o+["s_nop 0",pk("mul",d,d,t),pk("mul",d+2,d+2,t)]+neg(d)

def role_cv(e):
    e(f"""
    s_lshl_b32 s30, s2, 2
    s_add_u32 s30, s30, s16
    s_lshl_b32 s19, s30, 8
    v_lshl_add_u32 v64, v78, 2, s19
    s_lshl_b32 s19, s30, 1
    v_mov_b32 v66, s19
    global_load_ushort v68, v66, s[24:25]
    global_load_dword v70, v64, s[8:9]
    global_load_dword v72, v64, s[10:11]
    global_load_dword v74, v64, s[20:21]
    global_load_dword v76, v64, s[22:23]
    global_load_ushort v69, v66, s[26:27]
    s_getpc_b64 s[28:29]
    F_pc:
    v_lshlrev_b32 v64, 7, v0
    v_min_u32 v64, C_exit-F_pc, v64
    s_cmp_lt_u32 s2, 8
    s_cselect_b64 exec, -1, 1
    global_load_dword v64, v64, s[28:29]
    s_mov_b64 exec, -1
    """)
    e(f"s_mul_i32 s23, s16, {RS}")
    e(f"""
    v_and_b32 v232, 7, v78
    v_sub_u32 v232, 7, v232
    v_lshlrev_b32 v232, 2, v232
    v_and_b32 v47, 8, v78
    v_cmp_eq_u32 vcc, 0, v47
    v_lshrrev_b32 v61, 4, v78
    v_lshl_add_u32 v61, v61, 4, s23
    v_and_b32 v230, 15, v78
    v_mad_u32_u24 v233, v230, s31, v61
    """.replace("    v_and_b32 v232, 7, v78",f"    s_movk_i32 s31, {KS}\n    v_and_b32 v232, 7, v78"))
    for rg,(n0,n1,b0,b1) in enumerate([(0x76543210,0x43222100,0,8),(0x22111000,0x22111000,13,16),(0x11100000,0x11100000,19,21),(0x11100000,0x11100000,23,25)]):
        e(f"""
        s_mov_b32 s58, {n0:#x}
        s_mov_b32 s59, {n1:#x}
        v_bfe_u32 v47, s58, v232, 4
        v_bfe_u32 v231, s59, v232, 4
        v_add_u32 v47, {b0}, v47
        v_add_u32 v231, {b1}, v231
        v_cndmask_b32 v47, v231, v47, vcc
        v_mad_u32_u24 v{234+rg}, v47, s31, v61
        """)
    e(f"""
    v_bfe_u32 v231, v78, 4, 1
    v_lshrrev_b32 v232, 5, v78
    v_lshlrev_b32 v230, 4, v230
    v_lshl_add_u32 v230, v232, 9, v230
    v_lshlrev_b32 v231, 3, v231
    v_sub_u32 v230, v231, v230
    s_add_u32 s19, s23, {4080-256-3072}
    v_add_u32 v230, s19, v230
    v_and_b32 v231, 0x11, v78
    v_cmp_eq_u32 s[58:59], 16, v78
    v_cmp_eq_u32 s[60:61], 1, v231
    v_lshrrev_b32 v231, 5, v78
    v_mul_u32_u24 v231, 4160, v231
    v_add_u32 v231, s23, v231
    v_and_b32 v232, 15, v78
    v_lshl_add_u32 v232, v232, 2, v231
    """)
    e(f"""
    v_lshrrev_b32 v47, 2, v78
    s_add_u32 s27, s23, {HO}
    v_min_u32 v246, 29, v78
    v_lshl_add_u32 v246, v246, 4, s27
    v_mul_u32_u24 v245, {RS}, v65
    v_lshl_add_u32 v245, v47, 4, v245
    s_lshl_b32 s28, s16, 10
    s_add_u32 s28, s28, {HO+480}
    v_add_u32 v245, s28, v245
    """)
    e(f"""
    v_and_b32 v56, 15, v78
    v_lshrrev_b32 v57, 4, v78
    v_sub_u32 v58, 1, v56
    v_and_b32 v58, 1, v58
    v_mul_u32_u24 v241, 4158, v58
    v_lshlrev_b32 v59, 1, v56
    v_sub_u32 v241, v241, v59
    v_lshl_add_u32 v241, v57, 4, v241
    s_add_u32 s28, s23, {2*2031-512*7}
    v_add_u32 v60, s28, v241
    v_add_u32 v239, 1024, v60
    v_add_u32 v240, 2048, v60
    v_add_u32 v241, 3072, v60
    v_mov_b32 v238, v60
    v_lshlrev_b32 v242, 5, v56
    v_lshl_add_u32 v242, v57, 4, v242
    s_add_u32 s28, s27, 448
    v_add_u32 v242, s28, v242
    v_lshrrev_b32 v58, 1, v57
    v_lshl_add_u32 v58, v56, 1, v58
    v_and_b32 v59, 1, v57
    v_lshlrev_b32 v59, 3, v59
    v_lshl_add_u32 v243, v58, 6, v59
    s_lshl_b32 s28, s16, 4
    s_add_u32 s28, s28, {XB}
    v_add_u32 v243, s28, v243
    v_and_b32 v58, 7, v58
    s_and_b32 s28, s30, 6
    v_xor_b32 v58, s28, v58
    v_mul_u32_u24 v59, {4*73728//8}, v59
    v_lshl_add_u32 v244, v58, 4, v59
    v_lshrrev_b32 v58, 2, v56
    v_mul_u32_u24 v58, 73728, v58
    v_add_u32 v244, v244, v58
    """)
    e(f"""
    v_lshrrev_b32 v53, 3, v78
    v_mul_u32_u24 v53, {18432-128}, v53
    v_lshl_add_u32 v53, v78, 4, v53
    v_lshlrev_b32 v52, 4, v78
    v_lshlrev_b32 v54, 3, v65
    s_mul_i32 s53, s16, {32*18432}
    s_lshl_b32 s20, s2, 7
    s_add_u32 s53, s53, s20
    s_lshl_b32 s55, s2, 5
    s_add_u32 s55, s55, {MOD2}
    s_add_u32 s56, s55, {576*8}
    s_lshl_b32 s57, s30, 3
    s_add_u32 s57, s57, {MOD2+2*576*8}
    s_lshl_b32 s54, s16, 12
    s_lshl_b32 s52, s16, 10
    s_add_u32 s52, s52, {FFL}
    """)
    e('s_mov_b32 s63, 0\ns_waitcnt vmcnt(7)')
    ln_body(e)
    e(f"""
    v_mov_b32 v0, v78
    v_lshl_add_u32 v2, v0, 3, s23
    s_waitcnt vmcnt(7)
    v_lshlrev_b32 v68, 16, v68
    v_mul_f32 v68, {LOG2E:#x}, v68
    v_exp_f32 v68, v68
    """)
    for k in (70,72,74,76): e(f"v_and_b32 v{k+1}, 0xffff0000, v{k}\nv_lshlrev_b32 v{k}, 16, v{k}")
    e(f"v_mul_f32 v70, {LOG2E:#x}, v70\nv_mul_f32 v71, {LOG2E:#x}, v71\nv_exp_f32 v70, v70\nv_exp_f32 v71, v71\nv_lshlrev_b32 v69, 16, v69")
    bf16r(e,68); bf16r(e,70); bf16r(e,71)
    for k in range(4): e(f"v_mul_f32 v{70+k}, v{70+k}, v68")
    e("v_add_f32 v68, v68, v68")
    for k in range(2): e(f"v_mul_f32 v{70+k}, {0xbfb8aa3b:#x}, v{70+k}\nv_mul_f32 v{72+k}, 0.15915494, v{72+k}")
    for k in range(4): e(f"v_mul_f32 v{120+k}, v{74+k}, v68")
    cnt=[0,0]
    def wr(row,r,neg):
        t=(138 if neg else 94)+2*(cnt[neg]&1); cnt[neg]+=1; n="-" if neg else ""
        return [f"v_cvt_pk_bf16_f32 v{t}, v{r}, v{r+1}", f"v_cvt_pk_bf16_f32 v{t+1}, {n}v{r+2}, {n}v{r+3}", f"ds_write_b64 v2, {vr(t,2)} offset:{row*KS}"]
    col=direct(80,"0x41000000",84)+["v_mov_b32 v96, 0x3f803f80","v_mov_b32 v97, 0",f"ds_write_b64 v2, v[96:97] offset:{27*KS}"]+wr(28,80,0)
    cur=80
    for n in range(2,32):
        nx=84+4*(n&1); col+=cmul(nx,cur,80,92)+wr(27+n,nx,0); cur=nx
    rows=direct(100,"1.0",128)+direct(116,"0x43800000",132)+cmul(104,100,100,136)+cmul(108,104,104,136)+cmul(112,108,108,136)
    def chain(row0,start,mul,n):
        o=[]; cur=start
        for k in range(n):
            nx=128+4*(k&1); o+=cmul(nx,cur,mul,136)+wr(row0+k,nx,1); cur=nx
        return o
    g=120; rows+=wr(0,g,1)+chain(1,g,100,7)
    for (row,mul,n) in [(8,104,4),(13,108,2),(16,108,2),(19,112,1),(21,112,1),(23,112,1),(25,112,1)]:
        ng=244-g; rows+=cmul(ng,g,116,136); g=ng; rows+=wr(row,g,1)+chain(row+1,g,mul,n)
    mix=[x for p in __import__("itertools").zip_longest(col,rows) for x in p if x]
    cut=len(mix)*CUT//100
    for x in mix[:cut]: e(x)
    flagst(e,"F_c",42)
    e(f"""
    s_and_b32 s19, s2, 7
    s_lshr_b32 s20, s2, 3
    s_lshl_b32 s20, s20, 2
    s_add_u32 s20, s20, s16
    s_mul_i32 s21, s19, {576*1152}
    s_mul_i32 s22, s20, 9216
    s_add_u32 s21, s21, s22
    v_lshl_add_u32 v4, v0, 7, s21
    s_mul_i32 s21, s19, 1152
    s_lshl_b32 s22, s22, 3
    s_add_u32 s21, s21, s22
    v_lshrrev_b32 v5, 3, v0
    v_and_b32 v6, 7, v0
    v_mul_u32_u24 v5, 9216, v5
    v_lshl_add_u32 v5, v6, 7, v5
    v_add_u32 v5, s21, v5
    v_mul_u32_u24 v6, 9216, v6
    v_add_u32 v6, s21, v6
    v_add_u32 v7, 8192, v4
    {'global_load_dword v4, v4, s[46:47]' if PF2 else ''}
    {'global_load_dword v5, v5, s[44:45]' if PF1 else ''}
    s_mov_b64 exec, 0xff
    {'global_load_dword v7, v7, s[46:47]' if PF2 else ''}
    {'global_load_dword v6, v6, s[44:45] offset:1024' if PF1 else ''}
    s_mov_b64 exec, -1
    """.replace("v4","v48").replace("v5","v49").replace("v6","v50").replace("v7","v51"))
    stamp(e,4)
    e(f"""
    s_barrier
    """)
    cut2=len(mix)*CUT2//100
    for x in mix[cut:cut2]: e(x)
    PL="buffer_load_dwordx4 v[56:59], v52, s[12:15], s52 offen sc1"
    GL="buffer_load_dwordx2 v[224:225], v54, s[12:15], s55 offen sc1\nbuffer_load_dwordx2 v[226:227], v54, s[12:15], s56 offen sc1\nbuffer_load_dwordx2 v[228:229], v63, s[12:15], s57 offen sc1"
    e(PL)
    for x in mix[cut2:]: e(x)
    def spin(lab, regs, ld, first):
        e(f"s_mov_b32 s41, 0x8000\ns_waitcnt vmcnt({first})\n{lab}_p:")
        for r in regs: e(f"v_xor_b32 v{r}, s40, v{r}")
        e(f"v_or3_b32 v60, v{regs[0]}, v{regs[1]}, v{regs[2]}\nv_or_b32 v60, v60, v{regs[-1]}\nv_cmp_ne_u32 vcc, 0, v60\ns_nop 1\ns_cbranch_vccz {lab}_g")
        e(f"{ld}\ns_sub_u32 s41, s41, 1\ns_waitcnt vmcnt(0)\ns_cbranch_scc0 {lab}_p\n{lab}_g:")
    e("v_cndmask_b32 v69, 0, v69, s[58:59]\ns_waitcnt lgkmcnt(0)")
    rd=[]
    for s in range(8): rd+=[f"ds_read_b128 {vr(80+8*s,4)}, v233 offset:{27*KS+64*s}", f"ds_read_b128 {vr(84+8*s,4)}, v233 offset:{43*KS+64*s}"]
    for x in rd: e(x)
    def ard(rg): return [f"ds_read_b128 {vr(144+32*(rg&1)+4*s,4)}, v{234+rg} offset:{64*s}" for s in range(8)]
    for x in ard(0)+ard(1): e(x)
    def kout(rg):
        o=[]
        for h in range(2):
            a=16+8*rg+4*h; of=1024*(3-rg)+256*(1-h); t=12+h
            if rg>=2: o.append(f"v_cndmask_b32 v{a+3}, v{a+3}, v{a+2}, s[60:61]")
            if rg==0 and h==0: o.append(f"v_add_f32 v{a+3}, v{a+3}, v69")
            o+=[f"v_cvt_pk_bf16_f32 v{a}, v{a}, v{a+1}", f"v_cvt_pk_bf16_f32 v{t}, v{a+1}, v{a+2}", f"v_cvt_pk_bf16_f32 v{a+1}, v{a+2}, v{a+3}",
                f"ds_write_b64 v230, {vr(a,2)} offset:{of}", f"ds_write_b16 v230, v{a} offset:{of+4158}", f"ds_write_b32 v230, v{t} offset:{of+4160}", f"ds_write_b16_d16_hi v230, v{a+1} offset:{of+4164}"]
        return o
    for rg in range(4):
        if rg==2:
            spin("F_cp",[56,57,58,59],PL,0)
            stamp(e,5)
            e(GL)
            for i in range(4):
                e(f"s_add_u32 s25, s53, {XX+i*8*18432}\nbuffer_load_dwordx4 {vr(208+4*i,4)}, v53, s[12:15], s25 offen sc1")
        e(f"s_waitcnt lgkmcnt({8 if rg<3 else 0})")
        side=["ds_write_b32 v232, v63 offset:4096","ds_write_b16 v231, v63 offset:4094"]+kout(0)+kout(1) if rg==3 else []
        for s in range(8):
            for h in range(2):
                a=vr(16+8*rg+4*h,4)
                e(f"v_mfma_f32_16x16x32_bf16 {a}, {vr(144+32*(rg&1)+4*s,4)}, {vr(80+8*s+4*h,4)}, {a if s else 0}")
                for _ in range(2):
                    if side: e(side.pop(0))
        if rg<2:
            for x in ard(rg+2): e(x)
    for x in kout(2)+kout(3): e(x)
    stamp(e,6)
    e("v_mov_b32 v32, 0\nv_mov_b32 v33, 0\nv_mov_b32 v34, 0\nv_mov_b32 v35, 0\nds_write_b128 v246, v[32:35]")
    AB=[64,128]
    ACC=32; XRES=16
    AD=[238,239,240,241]
    subs=[f'v_subrev_u32 v{r}, 128, v{r}' for r in AD]
    def reads(buf, eoff):
        r=[]
        for g in range(8):
            r.append(f"ds_read_b128 {vr(AB[buf]+32+4*g,4)}, v242 offset:{512*g+eoff}")
            o=(512*((7-g)&1)+eoff)//4; ad=AD[(7-g)>>1]
            r.append(f"ds_read2_b32 {vr(AB[buf]+4*g,2)}, v{ad} offset0:{o} offset1:{o+1}")
            r.append(f"ds_read2_b32 {vr(AB[buf]+4*g+2,2)}, v{ad} offset0:{o+2} offset1:{o+3}")
        return r
    order=[(t,g) for t in range(8) for g in range(t+1)]
    def body(buf, side):
        for n,(t,g) in enumerate(order):
            a=vr(ACC+4*t,4)
            e(f"v_mfma_f32_16x16x32_bf16 {a}, {vr(AB[buf]+4*g,4)}, {vr(AB[buf]+32+4*(t-g),4)}, {a}")
            if n<len(side): e(side[n])
    spin("F_cg",[225,227,229],GL,4)
    e("v_add_f32 v9, 1.0, v226\nv_cvt_pk_bf16_f32 v9, v9, v9\nv_and_b32 v9, 0xffff0000, v9\ns_barrier")
    ra=[r for r in reads(0,0) if "read2" in r]
    for i in range(4):
        e(f's_waitcnt vmcnt({3-i})')
        for k in range(4):
            b=208+4*i+k; t=24+2*(k&1)
            e(f"""
            v_lshlrev_b32 v{t}, 16, v{b}
            v_and_b32 v{t+1}, 0xffff0000, v{b}
            v_fma_f32 v{t}, v{t}, v9, v224
            v_fma_f32 v{t+1}, v{t+1}, v9, v224
            v_cvt_pk_bf16_f32 v{b}, v{t}, v{t+1}
            """)
        e(f"ds_write_b128 v245, {vr(208+4*i,4)} offset:{i*256}")
        if i<2:
            for r in ra[8*i:8*i+8]: e(r)
    for i in range(4):
        e(f"s_add_u32 m0, s54, {XB+i*1024}\ns_add_u32 s25, s53, {XX+0x240000+i*8*18432}\nbuffer_load_dwordx4 v53, s[12:15], s25 offen sc1 lds")
    e(f"s_waitcnt lgkmcnt(0)\ns_barrier")
    for r in reads(0,0):
        if "read2" not in r: e(r)
    e(f"s_cmp_lg_u32 s30, 0\ns_cbranch_scc1 F_nb\ns_mov_b32 s41, {NONCE}\ns_mov_b64 exec, 1\nbuffer_store_dword v62, v63, s[12:15], s41 offen sc1\ns_mov_b64 exec, -1\nF_nb:")
    stamp(e,7)
    for k in range(32): e(f"v_mov_b32 v{ACC+k}, 0")
    e("\n".join(subs)+"\nv_subrev_u32 v242, 128, v242\ns_mov_b32 s29, 3\nF_loop:\ns_waitcnt lgkmcnt(0)")
    body(0, reads(1,64))
    e("s_waitcnt lgkmcnt(0)")
    body(1, reads(0,0)+subs+["v_subrev_u32 v242, 128, v242","s_sub_u32 s29, s29, 1","s_cmp_lg_u32 s29, 0"])
    e("s_cbranch_scc1 F_loop\ns_waitcnt lgkmcnt(0)")
    body(0, reads(1,64))
    e("s_waitcnt vmcnt(0) lgkmcnt(0)\ns_barrier")
    body(1, [f"ds_read_b64 {vr(XRES+2*t,2)}, v243 offset:{t*2048}" for t in range(8)]+
            [f"s_lshl_b32 s28, s30, 7", f"s_add_u32 s28, s28, {X1T}"])
    e("s_waitcnt lgkmcnt(0)")
    stamp(e,8)
    for t in range(8):
        x=XRES+2*t; a=ACC+4*t; q=64+4*(t&1)
        e(f"""
        v_lshlrev_b32 v{q}, 16, v{x}
        v_and_b32 v{q+1}, 0xffff0000, v{x}
        v_lshlrev_b32 v{q+2}, 16, v{x+1}
        v_and_b32 v{q+3}, 0xffff0000, v{x+1}
        v_fmac_f32 v{q}, v228, v{a}
        v_fmac_f32 v{q+1}, v228, v{a+1}
        v_fmac_f32 v{q+2}, v228, v{a+2}
        v_fmac_f32 v{q+3}, v228, v{a+3}
        v_cvt_pk_bf16_f32 v{x}, v{q}, v{q+1}
        v_cvt_pk_bf16_f32 v{x+1}, v{q+2}, v{q+3}
        """)
        if t&1: e(f"s_nop 1\nv_permlane16_swap_b32 v{x-2}, v{x}\nv_permlane16_swap_b32 v{x-1}, v{x+1}\ns_nop 1\nbuffer_store_dwordx4 {vr(x-2,4)}, v244, s[12:15], s28 offen sc1\ns_add_u32 s28, s28, {8*73728}")
    stamp_end(e,0,9,16)
    e("s_endpgm")

def gen_f():
    e=E()
    stamp(e,0)
    e(f"""
    s_cmp_ge_u32 s2, 256
    s_cbranch_scc1 F_exit
    s_load_dwordx2 s[4:5], s[0:1], 0
    s_load_dwordx4 s[8:11], s[0:1], 8
    s_load_dwordx8 s[20:27], s[0:1], 24
    s_load_dwordx8 s[44:51], s[0:1], 64
    s_load_dwordx4 s[36:39], s[0:1], 104
    s_mul_i32 s17, s2, 9216
    v_lshrrev_b32 v1, 5, v0
    v_and_b32 v2, 31, v0
    v_mul_u32_u24 v3, 1152, v1
    v_lshl_add_u32 v3, v2, 2, v3
    v_add_u32 v3, s17, v3
    v_mul_u32_u24 v1, 1184, v1
    v_lshl_add_u32 v1, v2, 2, v1
    v_add_u32 v1, {LNB}, v1
    v_lshrrev_b32 v60, 6, v0
    s_sub_u32 s3, s2, {F_HP}
    s_lshr_b32 s43, s3, 3
    s_and_b32 s30, s3, 7
    s_lshr_b32 s18, s43, 1
    s_lshl_b32 s18, s18, 3
    s_add_u32 s30, s30, s18
    s_lshl_b32 s30, s30, 1
    s_and_b32 s19, s43, 1
    s_add_u32 s3, s30, s19
    v_and_b32 v65, 3, v0
    v_and_b32 v78, 63, v0
    s_waitcnt lgkmcnt(0)
    """)
    for i in range(9): e(f"global_load_dword v{4+i}, v3, s[4:5] offset:{i*128}")
    e(f's_mov_b32 s41, {NONCE}\ns_load_dword s40, s[38:39], s41')
    srd(e, 12, 38, WSBYTES)
    stamp(e,1)
    e(f"v_readfirstlane_b32 s16, v60\ns_cmp_ge_u32 s2, {F_HP}\ns_cbranch_scc1 F_hp")
    role_cv(e); role_help(e)
    return kernel("front_kernel", e.text(), 256, 64, 256), f"; @launch kernel=front_kernel grid=(256,1,1) block=(256,1,1) lds={F_LDS}\n"
```
